```python
import torch

def _softmax(x, axis=-1):
    return torch.softmax(x, dim=axis)
def _gelu(x):
    return torch.nn.functional.gelu(x, approximate="tanh")
def _silu(x):
    return torch.nn.functional.silu(x)
def _sigmoid(x):
    return torch.sigmoid(x)
def _layernorm(x, axis=-1, eps=1e-5):
    m = x.mean(dim=axis, keepdim=True)
    v = x.var(dim=axis, keepdim=True, unbiased=False)
    return (x - m) / torch.sqrt(v + eps)
def _scatter_add(tgt, idx, src, axis=0):
    return tgt.clone().index_add_(axis, idx, src)
def _segment_sum(src, seg, n):
    out = torch.zeros((n,) + src.shape[1:], dtype=src.dtype)
    return out.index_add_(0, seg, src)
def _pad(x, pw):
    flat = tuple(v for pair in reversed(pw) for v in pair)
    return torch.nn.functional.pad(x, flat)

kernel_name = 'concat_heads__gqa_block_cached__gqa_block_cached__near_ridge'

def setup_inputs():

    _w = (lambda a: (lambda t: t.to(torch.bfloat16) if t.is_floating_point() else t)(torch.as_tensor(a)))
    def _A_setup():
        B, Sq, D = 16, 48, 448
        Hq, Hkv, Sk, Dh = 16, 8, 48, 256
        assert Hq % Hkv == 0, (Hq, Hkv)
        return {
            "x": _w((lambda *s: torch.randn(*s, dtype=torch.bfloat16) * 0.8)(B, Sq, D)),
            "k_cache": _w((lambda *s: torch.randn(*s, dtype=torch.bfloat16) * 0.8)(B, Hkv, Sk, Dh)),
            "v_cache": _w((lambda *s: torch.randn(*s, dtype=torch.bfloat16) * 0.05)(B, Hkv, Sk, Dh)),
            "wq": _w((lambda *s: torch.randn(*s, dtype=torch.bfloat16) * 0.8)(D, Hq * Dh) * (D ** -0.5)),
            "wo": _w((lambda *s: torch.randn(*s, dtype=torch.bfloat16) * 0.05)(Hq * Dh, D) * ((Hq * Dh) ** -0.5)),
        }
    _A_in = _A_setup()

    def _B_setup():
        B, Sq, D = 16, 48, 448
        Hq, Hkv, Sk, Dh = 16, 8, 48, 256
        assert Hq % Hkv == 0, (Hq, Hkv)
        return {
            "x": _w((lambda *s: torch.randn(*s, dtype=torch.bfloat16) * 0.8)(B, Sq, D)),
            "k_cache": _w((lambda *s: torch.randn(*s, dtype=torch.bfloat16) * 0.8)(B, Hkv, Sk, Dh)),
            "v_cache": _w((lambda *s: torch.randn(*s, dtype=torch.bfloat16) * 0.05)(B, Hkv, Sk, Dh)),
            "wq": _w((lambda *s: torch.randn(*s, dtype=torch.bfloat16) * 0.8)(D, Hq * Dh) * (D ** -0.5)),
            "wo": _w((lambda *s: torch.randn(*s, dtype=torch.bfloat16) * 0.05)(Hq * Dh, D) * ((Hq * Dh) ** -0.5)),
        }
    _B_in = _B_setup()

    return {
        "A_x": _A_in["x"],
        "A_k_cache": _A_in["k_cache"],
        "A_v_cache": _A_in["v_cache"],
        "A_wq": _A_in["wq"],
        "A_wo": _A_in["wo"],
        "B_x": _B_in["x"],
        "B_k_cache": _B_in["k_cache"],
        "B_v_cache": _B_in["v_cache"],
        "B_wq": _B_in["wq"],
        "B_wo": _B_in["wo"],
    }

def reference(A_x, A_k_cache, A_v_cache, A_wq, A_wo, B_x, B_k_cache, B_v_cache, B_wq, B_wo):
    def _A_ref(x, k_cache, v_cache, wq, wo):
        B, Sq, D = x.shape
        Hq, Dh = 16, 256
        Hkv = k_cache.shape[1]
        rep = Hq // Hkv
        q = (lambda x, *d: x.permute(*d))((x @ wq).reshape(B, Sq, Hq, Dh), 0, 2, 1, 3)
        k = (lambda x, n, axis: torch.repeat_interleave(x, n, dim=axis))(k_cache, rep, axis=1)
        v = (lambda x, n, axis: torch.repeat_interleave(x, n, dim=axis))(v_cache, rep, axis=1)
        scores = torch.einsum("bhqd,bhkd->bhqk", q, k) * (Dh ** -0.5)
        p = _softmax(scores, axis=-1)
        o = torch.einsum("bhqk,bhkd->bhqd", p, v)
        return (lambda x, *d: x.permute(*d))(o, 0, 2, 1, 3).reshape(B, Sq, Hq * Dh) @ wo

    def _B_ref(x, k_cache, v_cache, wq, wo):
        B, Sq, D = x.shape
        Hq, Dh = 16, 256
        Hkv = k_cache.shape[1]
        rep = Hq // Hkv
        q = (lambda x, *d: x.permute(*d))((x @ wq).reshape(B, Sq, Hq, Dh), 0, 2, 1, 3)
        k = (lambda x, n, axis: torch.repeat_interleave(x, n, dim=axis))(k_cache, rep, axis=1)
        v = (lambda x, n, axis: torch.repeat_interleave(x, n, dim=axis))(v_cache, rep, axis=1)
        scores = torch.einsum("bhqd,bhkd->bhqk", q, k) * (Dh ** -0.5)
        p = _softmax(scores, axis=-1)
        o = torch.einsum("bhqk,bhkd->bhqd", p, v)
        return (lambda x, *d: x.permute(*d))(o, 0, 2, 1, 3).reshape(B, Sq, Hq * Dh) @ wo

    a = _A_ref(A_x, A_k_cache, A_v_cache, A_wq, A_wo)
    b = _B_ref(B_x, B_k_cache, B_v_cache, B_wq, B_wo)
    return torch.concatenate([a, b], axis=-1)
```

```python
import sys

NAME = "concat_heads__gqa_block_cached__gqa_block_cached__near_ridge"

HEADER = """; Kernarg layout for this problem (104 bytes, ptrs only, base s[0:1]):
"""


class A:
    def __init__(self):
        self.l = []

    def __call__(self, s):
        self.l.append("    " + s)

    def lab(self, s):
        self.l.append(s + ":")

    def c(self, s):
        self.l.append("    ; " + s)

    def text(self):
        return "\n".join(self.l) + "\n"


def vr(b, n):
    return f"v[{b}:{b+n-1}]"


def sr(b, n):
    return f"s[{b}:{b+n-1}]"


XSTR = 928
WSTR = 544
XS = 0
WB = [96 * XSTR, 96 * XSTR + 64 * WSTR]
K1_LDS = 96 * XSTR + 2 * 64 * WSTR
QS = WB[0]
VS = XS


def gen_k1(a):
    a.lab("k1_kernel")
    a("s_cmp_ge_u32 s2, 256")
    a("s_cbranch_scc1 k1_end")
    a("s_and_b32 s3, s2, 7")
    a("s_lshr_b32 s4, s2, 3")
    a("s_lshl_b32 s5, s3, 2")
    a("s_lshr_b32 s6, s4, 3")
    a("s_add_u32 s5, s5, s6")
    a("s_lshr_b32 s6, s5, 4")
    a("s_and_b32 s7, s5, 15")
    a("s_and_b32 s8, s4, 7")
    a("s_mul_i32 s9, s6, 40")
    a("s_add_u32 s10, s0, s9")
    a("s_addc_u32 s11, s1, 0")
    a("s_load_dwordx8 s[12:19], s[10:11], 0")
    a("s_load_dwordx2 s[20:21], s[0:1], 96")
    a("v_and_b32 v1, 63, v0")
    a("v_lshrrev_b32 v2, 6, v0")
    a("s_nop 0")
    a("v_readfirstlane_b32 s24, v2")
    a("s_waitcnt lgkmcnt(0)")
    a("s_mul_i32 s9, s8, 86016")
    a("s_add_u32 s12, s12, s9")
    a("s_addc_u32 s13, s13, 0")
    a("s_lshl_b32 s9, s8, 4")
    a("s_lshr_b32 s25, s7, 1")
    a("s_add_u32 s9, s9, s25")
    a("s_mul_i32 s9, s9, 24576")
    a("s_add_u32 s14, s14, s9")
    a("s_addc_u32 s15, s15, 0")
    a("s_add_u32 s16, s16, s9")
    a("s_addc_u32 s17, s17, 0")
    a("s_add_u32 s26, s16, 196608")
    a("s_addc_u32 s27, s17, 0")
    a("s_lshl_b32 s9, s7, 9")
    a("s_add_u32 s22, s18, s9")
    a("s_addc_u32 s23, s19, 0")
    a("s_mov_b32 s9, 1171")
    a("v_mul_lo_u32 v3, v0, s9")
    a("v_lshrrev_b32 v3, 16, v3")
    a("v_mul_u32_u24 v4, 56, v3")
    a("v_sub_u32 v4, v0, v4")
    a("v_lshlrev_b32 v4, 4, v4")
    a("v_mul_u32_u24 v5, 896, v3")
    a("v_add_u32 v10, v5, v4")
    a("v_mul_u32_u24 v5, %d, v3" % XSTR)
    a("v_add_u32 v11, v5, v4")
    a("v_add_u32 v18, %d, v11" % (8 * 8 * XSTR))
    a("v_lshrrev_b32 v3, 5, v0")
    a("v_and_b32 v4, 31, v0")
    a("v_lshlrev_b32 v4, 4, v4")
    a("v_lshlrev_b32 v5, 13, v3")
    a("v_add_u32 v12, v5, v4")
    a("v_bfe_u32 v5, v3, 2, 1")
    a("v_lshlrev_b32 v5, 4, v5")
    a("v_lshrrev_b32 v6, 3, v3")
    a("v_lshlrev_b32 v6, 2, v6")
    a("v_add_u32 v5, v5, v6")
    a("v_and_b32 v6, 3, v3")
    a("v_add_u32 v5, v5, v6")
    a("v_mul_u32_u24 v5, %d, v5" % WSTR)
    a("v_add_u32 v13, v5, v4")
    a("v_add_u32 v13, %d, v13" % WB[0])
    a("v_lshlrev_b32 v16, 4, v0")
    a("v_mul_u32_u24 v5, %d, v3" % WSTR)
    a("v_add_u32 v17, v5, v4")
    a("v_and_b32 v3, 15, v1")
    a("v_lshrrev_b32 v4, 4, v1")
    a("s_lshr_b32 s25, s24, 2")
    a("s_and_b32 s28, s24, 3")
    a("s_mul_i32 s29, s25, %d" % (48 * XSTR))
    a("v_mul_u32_u24 v5, %d, v3" % XSTR)
    a("v_lshlrev_b32 v6, 4, v4")
    a("v_add3_u32 v14, v5, v6, s29")
    a("v_lshrrev_b32 v5, 2, v3")
    a("v_lshl_add_u32 v5, v4, 2, v5")
    a("v_mul_u32_u24 v5, %d, v5" % WSTR)
    a("v_and_b32 v6, 3, v1")
    a("v_lshlrev_b32 v6, 3, v6")
    a("s_lshl_b32 s29, s28, 7")
    a("v_add3_u32 v15, v5, v6, s29")
    a("v_add_u32 v15, %d, v15" % WB[0])
    a("v_add_u32 v19, v5, v6")
    a("v_cmp_gt_u32 vcc, 448, v0")
    a("s_and_saveexec_b64 s[30:31], vcc")
    a("s_cbranch_execz k1_xskip")
    a("v_mov_b32 v2, v10")
    for j in range(12):
        a(f"global_load_dwordx4 {vr(68+4*j,4)}, v2, s[12:13]")
        if j < 11:
            a("v_add_u32 v2, 7168, v2")
    for j in range(12):
        a(f"s_waitcnt vmcnt({11-j})")
        if j < 8:
            a(f"ds_write_b128 v11, {vr(68+4*j,4)} offset:{j*8*XSTR}")
        else:
            a(f"ds_write_b128 v18, {vr(68+4*j,4)} offset:{(j-8)*8*XSTR}")
    a.lab("k1_xskip")
    a("s_mov_b64 exec, s[30:31]")

    def wq_loads():
        for j in range(4):
            a(f"global_load_dwordx4 {vr(124+4*j,4)}, v12, s[22:23]")
            a("s_add_u32 s22, s22, 131072")
            a("s_addc_u32 s23, s23, 0")

    def wq_writes(buf):
        for j in range(4):
            off = WB[buf] - WB[0] + ((j & 1) * 8 + (j >> 1) * 32) * WSTR
            a(f"ds_write_b128 v13, {vr(124+4*j,4)} offset:{off}")

    wq_loads()
    a("s_waitcnt vmcnt(0)")
    wq_writes(0)
    for r in range(20, 68):
        a(f"v_mov_b32 v{r}, 0")
    a("s_waitcnt lgkmcnt(0)")
    a("s_barrier")

    def frag_reads(c, ks, setn):
        buf = c & 1
        kstep = 2 * c + ks
        for qt in range(3):
            a(f"ds_read_b128 {vr(100+12*setn+4*qt,4)}, v14 offset:{qt*16*XSTR + kstep*64}")
        for dt in range(4):
            base = WB[buf] - WB[0] + ks * 32 * WSTR + dt * 32
            a(f"ds_read_b64_tr_b16 {vr(68+16*setn+4*dt,2)}, v15 offset:{base}")
            a(f"ds_read_b64_tr_b16 {vr(68+16*setn+4*dt+2,2)}, v15 offset:{base+16*WSTR}")

    def mfmas(setn):
        for dt in range(4):
            for qt in range(3):
                acc = 20 + (dt * 3 + qt) * 4
                a(f"v_mfma_f32_16x16x32_bf16 {vr(acc,4)}, {vr(68+16*setn+4*dt,4)}, {vr(100+12*setn+4*qt,4)}, {vr(acc,4)}")

    for c in range(7):
        a.c(f"---- chunk {c}")
        if c < 6:
            wq_loads()
        else:
            a("v_mov_b32 v2, v16")
            for j in range(6):
                sb = "s[16:17]" if j < 3 else "s[26:27]"
                if j % 3 == 0:
                    a("v_mov_b32 v2, v16")
                else:
                    a("v_add_u32 v2, 8192, v2")
                a(f"global_load_dwordx4 {vr(164+4*j,4)}, v2, {sb}")
        frag_reads(c, 0, 0)
        a("s_waitcnt lgkmcnt(0)")
        frag_reads(c, 1, 1)
        mfmas(0)
        a("s_waitcnt lgkmcnt(0)")
        mfmas(1)
        if c < 6:
            a("s_waitcnt vmcnt(0)")
            wq_writes((c + 1) & 1)
            a("s_waitcnt lgkmcnt(0)")
        a("s_barrier")
    a("v_and_b32 v3, 15, v1")
    a("v_lshrrev_b32 v4, 4, v1")
    a("s_mul_i32 s29, s25, %d" % (48 * WSTR))
    a("s_lshl_b32 s30, s28, 7")
    a("s_add_u32 s29, s29, s30")
    a("v_mul_u32_u24 v5, %d, v3" % WSTR)
    a("v_lshlrev_b32 v6, 3, v4")
    a("v_add3_u32 v2, v5, v6, s29")
    a("v_add_u32 v2, %d, v2" % QS)
    for dt in range(4):
        for qt in range(3):
            acc = 20 + (dt * 3 + qt) * 4
            a(f"v_cvt_pk_bf16_f32 v6, v{acc}, v{acc+1}")
            a(f"v_cvt_pk_bf16_f32 v7, v{acc+2}, v{acc+3}")
            a(f"ds_write_b64 v2, v[6:7] offset:{qt*16*WSTR + dt*32}")
    a("s_waitcnt vmcnt(0)")
    for j in range(6):
        off = VS + (j // 3) * 48 * WSTR + (j % 3) * 16 * WSTR
        a(f"ds_write_b128 v17, {vr(164+4*j,4)} offset:{off}")
    a("s_cmp_lt_u32 s24, 6")
    a("s_cselect_b32 s31, 1, 0")
    a("s_cmp_ge_u32 s24, 3")
    a("s_cselect_b32 s25, 1, 0")
    a("s_mul_i32 s30, s25, 3")
    a("s_sub_u32 s28, s24, s30")
    a("s_mul_i32 s30, s25, 196608")
    a("s_add_u32 s14, s14, s30")
    a("s_addc_u32 s15, s15, 0")
    a("s_cmp_eq_u32 s31, 0")
    a("s_cbranch_scc1 k1_noK")
    a("v_lshlrev_b32 v5, 9, v3")
    a("v_lshl_add_u32 v2, v4, 4, v5")
    for kt in range(3):
        if kt:
            a("v_add_u32 v2, 8192, v2")
        for s in range(8):
            a(f"global_load_dwordx4 {vr(68+(kt*8+s)*4,4)}, v2, s[14:15] offset:{s*64}")
    a.lab("k1_noK")
    a("s_waitcnt lgkmcnt(0)")
    a("s_barrier")
    a("s_cmp_eq_u32 s31, 0")
    a("s_cbranch_scc1 k1_end")
    a("s_mul_i32 s29, s25, 48")
    a("s_lshl_b32 s30, s28, 4")
    a("s_add_u32 s29, s29, s30")
    a("s_mul_i32 s29, s29, %d" % WSTR)
    a("v_mul_u32_u24 v5, %d, v3" % WSTR)
    a("v_lshlrev_b32 v6, 4, v4")
    a("v_add3_u32 v2, v5, v6, s29")
    a("v_add_u32 v2, %d, v2" % QS)
    for s in range(8):
        a(f"ds_read_b128 {vr(188+4*s,4)}, v2 offset:{s*64}")
    for r in range(220, 232):
        a(f"v_mov_b32 v{r}, 0")
    a("s_waitcnt vmcnt(0) lgkmcnt(0)")
    for kt in range(3):
        for s in range(8):
            a(f"v_mfma_f32_16x16x32_bf16 {vr(220+4*kt,4)}, {vr(68+(kt*8+s)*4,4)}, {vr(188+4*s,4)}, {vr(220+4*kt,4)}")
    a("s_mul_i32 s29, s25, %d" % (48 * WSTR))
    a("v_add_u32 v19, s29, v19")
    a("s_nop 7")
    a("s_nop 1")
    S = list(range(220, 232))
    for j in range(0, 12, 2):
        a(f"v_cvt_pk_bf16_f32 v6, v{S[j]}, v{S[j+1]}")
        a(f"v_lshlrev_b32 v{S[j]}, 16, v6")
        a(f"v_and_b32 v{S[j+1]}, 0xffff0000, v6")
    a(f"v_max3_f32 v6, v{S[0]}, v{S[1]}, v{S[2]}")
    for j in range(3, 11, 2):
        a(f"v_max3_f32 v6, v6, v{S[j]}, v{S[j+1]}")
    a(f"v_max_f32 v6, v6, v{S[11]}")
    a("v_mov_b32 v7, v6")
    a("s_nop 1")
    a("v_permlane32_swap_b32 v6, v7")
    a("v_max_f32 v6, v6, v7")
    a("v_mov_b32 v7, v6")
    a("s_nop 1")
    a("v_permlane16_swap_b32 v6, v7")
    a("v_max_f32 v6, v6, v7")
    import struct
    cbits = struct.unpack("<I", struct.pack("<f", 0.0625 * 1.4426950408889634))[0]
    a(f"s_mov_b32 s29, 0x{cbits:08x}")
    a("v_mul_f32 v6, s29, v6")
    for j in range(12):
        a(f"v_fma_f32 v{S[j]}, v{S[j]}, s29, -v6")
    for j in range(12):
        a(f"v_exp_f32 v{S[j]}, v{S[j]}")
    a("s_nop 0")
    a(f"v_add_f32 v6, v{S[0]}, v{S[1]}")
    for j in range(2, 12):
        a(f"v_add_f32 v6, v6, v{S[j]}")
    a("v_mov_b32 v7, v6")
    a("s_nop 1")
    a("v_permlane32_swap_b32 v6, v7")
    a("v_add_f32 v6, v6, v7")
    a("v_mov_b32 v7, v6")
    a("s_nop 1")
    a("v_permlane16_swap_b32 v6, v7")
    a("v_add_f32 v6, v6, v7")
    a("v_rcp_f32 v6, v6")
    a("s_nop 0")
    for j in range(12):
        a(f"v_mul_f32 v{S[j]}, v{S[j]}, v6")
    for j in range(6):
        a(f"v_cvt_pk_bf16_f32 v{232+j}, v{S[2*j]}, v{S[2*j+1]}")
    for r in range(68, 132):
        a(f"v_mov_b32 v{r}, 0")

    def vreads(t):
        b = 188 + (t % 4) * 4
        a(f"ds_read_b64_tr_b16 {vr(b,2)}, v19 offset:{VS + t*32}")
        a(f"ds_read_b64_tr_b16 {vr(b+2,2)}, v19 offset:{VS + t*32 + 16*WSTR}")
        a(f"ds_read_b64_tr_b16 {vr(132+2*t,2)}, v19 offset:{VS + t*32 + 32*WSTR}")

    for t in range(3):
        vreads(t)
    for t in range(16):
        if t + 3 < 16:
            vreads(t + 3)
            a("s_waitcnt lgkmcnt(9)")
        else:
            a(f"s_waitcnt lgkmcnt({3*(15-t)})")
        b = 188 + (t % 4) * 4
        a(f"v_mfma_f32_16x16x32_bf16 {vr(68+4*t,4)}, {vr(b,4)}, v[232:235], {vr(68+4*t,4)}")
    a("s_nop 7")
    for t in range(16):
        a(f"v_mfma_f32_16x16x16_bf16 {vr(68+4*t,4)}, {vr(132+2*t,2)}, v[236:237], {vr(68+4*t,4)}")
    a("s_mul_i32 s29, s6, 768")
    a("s_lshl_b32 s30, s8, 1")
    a("s_add_u32 s30, s30, s25")
    a("s_mul_i32 s30, s30, 48")
    a("s_add_u32 s29, s29, s30")
    a("s_lshl_b32 s30, s28, 4")
    a("s_add_u32 s29, s29, s30")
    a("s_lshl_b32 s29, s29, 13")
    a("s_lshl_b32 s30, s7, 9")
    a("s_add_u32 s29, s29, s30")
    a("s_add_u32 s20, s20, s29")
    a("s_addc_u32 s21, s21, 0")
    a("v_lshlrev_b32 v5, 13, v3")
    a("v_lshl_add_u32 v2, v4, 4, v5")
    a("s_nop 7")
    for u in range(8):
        t0, t1 = 68 + 8 * u, 68 + 8 * u + 4
        a(f"v_cvt_pk_bf16_f32 v8, v{t0}, v{t0+1}")
        a(f"v_cvt_pk_bf16_f32 v9, v{t0+2}, v{t0+3}")
        a(f"v_cvt_pk_bf16_f32 v10, v{t1}, v{t1+1}")
        a(f"v_cvt_pk_bf16_f32 v11, v{t1+2}, v{t1+3}")
        a(f"global_store_dwordx4 v2, v[8:11], s[20:21] offset:{u*64}")
        a("s_nop 1")
    a.lab("k1_end")
    a("s_endpgm")


K2STR = 160
K2BUF = 32 * K2STR
K2_LDS = 8 * 12 * 1024


def gen_k2(a):
    a.lab("k2_kernel")
    a("s_cmp_ge_u32 s2, 224")
    a("s_cbranch_scc1 k2_end")
    a("s_and_b32 s3, s2, 7")
    a("s_lshr_b32 s4, s2, 3")
    a("s_lshr_b32 s6, s3, 2")
    a("s_and_b32 s5, s3, 3")
    a("s_mul_i32 s7, s4, 37")
    a("s_lshr_b32 s7, s7, 8")
    a("s_mul_i32 s8, s7, 7")
    a("s_sub_u32 s8, s4, s8")
    a("s_lshl_b32 s5, s5, 2")
    a("s_add_u32 s7, s7, s5")
    a("s_mul_i32 s9, s6, 40")
    a("s_add_u32 s10, s0, s9")
    a("s_addc_u32 s11, s1, 0")
    a("s_load_dwordx2 s[12:13], s[10:11], 32")
    a("s_load_dwordx2 s[14:15], s[0:1], 80")
    a("s_load_dwordx2 s[16:17], s[0:1], 96")
    a("v_and_b32 v1, 63, v0")
    a("v_lshrrev_b32 v2, 6, v0")
    a("s_nop 0")
    a("v_readfirstlane_b32 s24, v2")
    a("s_waitcnt lgkmcnt(0)")
    a("s_mul_i32 s9, s6, 768")
    a("s_mul_i32 s18, s7, 48")
    a("s_add_u32 s9, s9, s18")
    a("s_lshl_b32 s9, s9, 13")
    a("s_lshl_b32 s18, s24, 10")
    a("s_add_u32 s9, s9, s18")
    a("s_add_u32 s16, s16, s9")
    a("s_addc_u32 s17, s17, 0")
    a("s_mul_i32 s9, s24, %d" % (512 * 896))
    a("s_lshl_b32 s18, s8, 7")
    a("s_add_u32 s9, s9, s18")
    a("s_add_u32 s12, s12, s9")
    a("s_addc_u32 s13, s13, 0")
    a("v_and_b32 v3, 15, v1")
    a("v_lshrrev_b32 v4, 4, v1")
    a("v_lshlrev_b32 v5, 13, v3")
    a("v_lshl_add_u32 v10, v4, 4, v5")
    a("v_add_u32 v11, %d, v10" % (16 * 8192))
    a("v_add_u32 v12, %d, v10" % (32 * 8192))
    a("v_lshrrev_b32 v5, 3, v1")
    a("v_and_b32 v6, 7, v1")
    a("v_lshlrev_b32 v6, 4, v6")
    a("v_mul_u32_u24 v7, 896, v5")
    a("v_add_u32 v13, v7, v6")
    for j in range(1, 4):
        a(f"v_add_u32 v{13+j}, {7168*j}, v13")
    a("s_mul_i32 s18, s24, %d" % (2 * K2BUF))
    a("v_mul_u32_u24 v7, %d, v5" % K2STR)
    a("v_add3_u32 v17, v7, v6, s18")
    a("v_lshrrev_b32 v5, 2, v3")
    a("v_lshl_add_u32 v5, v4, 2, v5")
    a("v_mul_u32_u24 v5, %d, v5" % K2STR)
    a("v_and_b32 v6, 3, v1")
    a("v_lshlrev_b32 v6, 3, v6")
    a("v_add3_u32 v18, v5, v6, s18")
    for r in range(20, 68):
        a(f"v_mov_b32 v{r}, 0")
    NS = 3

    def loads(s):
        n = s % NS
        b = 68 + 28 * n
        for qt in range(3):
            a(f"global_load_dwordx4 {vr(b+4*qt,4)}, v{10+qt}, s[16:17] offset:{s*64}")
        for j in range(4):
            a(f"global_load_dwordx4 {vr(b+12+4*j,4)}, v{13+j}, s[12:13]")
        a("s_add_u32 s12, s12, %d" % (32 * 896))
        a("s_addc_u32 s13, s13, 0")

    loads(0)
    loads(1)
    for s in range(16):
        n = s % NS
        b = 68 + 28 * n
        if s + 2 < 16:
            loads(s + 2)
            a("s_waitcnt vmcnt(14)")
        elif s + 1 < 16:
            a("s_waitcnt vmcnt(7)")
        else:
            a("s_waitcnt vmcnt(0)")
        lb = (s & 1) * K2BUF
        for j in range(4):
            a(f"ds_write_b128 v17, {vr(b+12+4*j,4)} offset:{lb + j*8*K2STR}")
        for nt in range(4):
            a(f"ds_read_b64_tr_b16 {vr(152+4*nt,2)}, v18 offset:{lb + nt*32}")
            a(f"ds_read_b64_tr_b16 {vr(152+4*nt+2,2)}, v18 offset:{lb + nt*32 + 16*K2STR}")
        for nt in range(4):
            a(f"s_waitcnt lgkmcnt({6-2*nt})")
            for qt in range(3):
                acc = 20 + (nt * 3 + qt) * 4
                a(f"v_mfma_f32_16x16x32_bf16 {vr(acc,4)}, {vr(152+4*nt,4)}, {vr(b+4*qt,4)}, {vr(acc,4)}")
    a("s_barrier")
    a("s_nop 7")
    a("s_mul_i32 s18, s24, 12288")
    a("v_lshlrev_b32 v2, 4, v1")
    a("v_add_u32 v2, s18, v2")
    for t in range(12):
        a(f"ds_write_b128 v2, {vr(20+4*t,4)} offset:{t*1024}")
    a("s_waitcnt lgkmcnt(0)")
    a("s_barrier")
    a("v_lshlrev_b32 v2, 4, v1")
    a("s_lshl_b32 s18, s24, 10")
    a("v_add_u32 v2, s18, v2")
    a("v_add_u32 v19, 49152, v2")
    a("s_mul_i32 s9, s7, 48 * 1792")
    a("s_mul_i32 s18, s6, 896")
    a("s_add_u32 s9, s9, s18")
    a("s_lshl_b32 s18, s8, 7")
    a("s_add_u32 s9, s9, s18")
    a("s_add_u32 s14, s14, s9")
    a("s_addc_u32 s15, s15, 0")
    a("v_mul_u32_u24 v5, 1792, v3")
    a("v_lshl_add_u32 v9, v4, 3, v5")

    def do_tile(extra):
        a(f"s_add_u32 s18, s24, {extra}")
        a("s_mul_i32 s19, s18, 86")
        a("s_lshr_b32 s19, s19, 8")
        a("s_mul_i32 s20, s19, 3")
        a("s_sub_u32 s20, s18, s20")
        a("s_mul_i32 s20, s20, %d" % (16 * 1792))
        a("s_lshl_b32 s19, s19, 5")
        a("s_add_u32 s20, s20, s19")
        for w in range(8):
            if w < 4:
                a(f"ds_read_b128 {vr(68+4*w,4)}, v2 offset:{w*12288 + extra*1024}")
            else:
                a(f"ds_read_b128 {vr(68+4*w,4)}, v19 offset:{(w-4)*12288 + extra*1024}")
        a("s_waitcnt lgkmcnt(0)")
        for r in range(4):
            a(f"v_add_f32 v{68+r}, v{68+r}, v{72+r}")
            for w in range(2, 8):
                a(f"v_add_f32 v{68+r}, v{68+r}, v{68+4*w+r}")
        a("v_cvt_pk_bf16_f32 v6, v68, v69")
        a("v_cvt_pk_bf16_f32 v7, v70, v71")
        a("v_add_u32 v8, s20, v9")
        a("global_store_dwordx2 v8, v[6:7], s[14:15]")

    do_tile(0)
    a("s_cmp_ge_u32 s24, 4")
    a("s_cbranch_scc1 k2_end")
    do_tile(8)
    a.lab("k2_end")
    a("s_endpgm")


def kd(name, vgpr, sgpr):
    acc = (vgpr + 3) // 4 * 4
    return f""".amdhsa_kernel {name}
  .amdhsa_next_free_vgpr {vgpr}
  .amdhsa_next_free_sgpr {sgpr}
  .amdhsa_accum_offset {acc}
  .amdhsa_group_segment_fixed_size 0
  .amdhsa_kernarg_size 104
  .amdhsa_user_sgpr_count 2
  .amdhsa_user_sgpr_kernarg_segment_ptr 1
  .amdhsa_system_sgpr_workgroup_id_x 1
.end_amdhsa_kernel
"""


def main():
    out = HEADER
    out += f"; @launch kernel=k1_kernel grid=(256,1,1) block=(512,1,1) lds={K1_LDS}\n"
    out += f"; @launch kernel=k2_kernel grid=(224,1,1) block=(512,1,1) lds={K2_LDS}\n"
    out += '.amdgcn_target "amdgcn-amd-amdhsa--gfx950"\n.text\n'
    for nm, g in (("k1_kernel", gen_k1), ("k2_kernel", gen_k2)):
        a = A()
        out += f".globl {nm}\n.p2align 8\n.type {nm},@function\n"
        g(a)
        out += a.text()
    out += '.section .rodata,"a"\n.p2align 6\n'
    out += kd("k1_kernel", 240, 40)
    out += ".p2align 6\n"
    out += kd("k2_kernel", 168, 40)
    path = sys.argv[1] if len(sys.argv) > 1 else f"cdna_kernels/{NAME}.s"
    open(path, "w").write(out)


if __name__ == "__main__":
    main()
```

```python
import sys

NAME = "concat_heads__gqa_block_cached__gqa_block_cached__near_ridge"

HEADER = """; Kernarg layout for this problem (104 bytes, ptrs only, base s[0:1]):
"""


TS_ON = False


class A:
    def __init__(self):
        self.l = []
        self.nts = 0

    def ts(self):
        if not TS_ON:
            return
        n = self.nts
        self.nts += 1
        assert n < 30
        self.l.append(f"    s_memtime s[{40+2*n}:{41+2*n}]")
        self.l.append("    s_waitcnt lgkmcnt(0)")

    def ts_dump(self, wgsel):
        if not TS_ON:
            return
        self.l.append(f"    s_cmp_lg_u32 s2, {wgsel}")
        self.l.append("    s_cbranch_scc1 Lnodump%d" % id(self))
        self.l.append("    s_cmp_lg_u32 s24, 0")
        self.l.append("    s_cbranch_scc1 Lnodump%d" % id(self))
        self.l.append("    s_load_dwordx2 s[34:35], s[0:1], 88")
        self.l.append("    s_waitcnt lgkmcnt(0)")
        self.l.append("    v_mov_b32 v2, 0")
        for n in range(self.nts):
            self.l.append(f"    s_sub_u32 s36, s{40+2*n}, s40")
            self.l.append(f"    v_mov_b32 v3, s36")
            self.l.append(f"    global_store_dword v2, v3, s[34:35] offset:{4*n}")
        self.l.append("Lnodump%d:" % id(self))

    def __call__(self, s):
        self.l.append("    " + s)

    def lab(self, s):
        self.l.append(s + ":")

    def c(self, s):
        self.l.append("    ; " + s)

    def text(self):
        return "\n".join(self.l) + "\n"


def vr(b, n):
    return f"v[{b}:{b+n-1}]"


def sr(b, n):
    return f"s[{b}:{b+n-1}]"


XSTR = 928
WSTR = 544
XS = 0
WB = [96 * XSTR, 96 * XSTR + 64 * WSTR]
K1_LDS = 96 * XSTR + 2 * 64 * WSTR
QS = 0
VS = 96 * WSTR
KS = 2 * 96 * WSTR
PW_OFF = 16777216


def gen_k1(a):
    a.lab("k1_kernel")
    a("s_cmp_ge_u32 s2, 256")
    a("s_cbranch_scc1 k1_end")
    a("s_and_b32 s3, s2, 7")
    a("s_lshr_b32 s4, s2, 3")
    a("s_lshl_b32 s5, s3, 2")
    a("s_lshr_b32 s6, s4, 3")
    a("s_add_u32 s5, s5, s6")
    a("s_lshr_b32 s6, s5, 4")
    a("s_and_b32 s7, s5, 15")
    a("s_and_b32 s8, s4, 7")
    a("s_mul_i32 s9, s6, 40")
    a("s_add_u32 s10, s0, s9")
    a("s_addc_u32 s11, s1, 0")
    a("s_load_dwordx8 s[12:19], s[10:11], 0")
    a("s_load_dwordx2 s[20:21], s[0:1], 96")
    a("v_and_b32 v1, 63, v0")
    a("v_lshrrev_b32 v2, 6, v0")
    a("s_nop 0")
    a("v_readfirstlane_b32 s24, v2")
    a("v_subrev_u32 v3, 64, v0")
    a("v_cmp_gt_u32 vcc, 448, v0")
    a("s_nop 1")
    a("v_cndmask_b32 v2, v3, v0, vcc")
    a("s_mov_b32 s9, 1171")
    a("v_mul_lo_u32 v3, v2, s9")
    a("v_lshrrev_b32 v3, 16, v3")
    a("v_mul_u32_u24 v4, 56, v3")
    a("v_sub_u32 v4, v2, v4")
    a("v_lshlrev_b32 v4, 4, v4")
    a("v_mul_u32_u24 v5, 896, v3")
    a("v_add_u32 v10, v5, v4")
    a("v_mul_u32_u24 v5, %d, v3" % XSTR)
    a("v_add_u32 v11, v5, v4")
    a("v_add_u32 v18, %d, v11" % (8 * 8 * XSTR))
    a("v_lshrrev_b32 v3, 5, v0")
    a("v_and_b32 v4, 31, v0")
    a("v_lshlrev_b32 v4, 4, v4")
    a("v_lshlrev_b32 v5, 13, v3")
    a("v_add_u32 v12, v5, v4")
    a("v_bfe_u32 v5, v3, 2, 1")
    a("v_lshlrev_b32 v5, 4, v5")
    a("v_lshrrev_b32 v6, 3, v3")
    a("v_lshlrev_b32 v6, 2, v6")
    a("v_add_u32 v5, v5, v6")
    a("v_and_b32 v6, 3, v3")
    a("v_add_u32 v5, v5, v6")
    a("v_mul_u32_u24 v5, %d, v5" % WSTR)
    a("v_add_u32 v13, v5, v4")
    a("v_add_u32 v13, %d, v13" % WB[0])
    a("v_lshlrev_b32 v16, 4, v0")
    a("v_mul_u32_u24 v5, %d, v3" % WSTR)
    a("v_add_u32 v17, v5, v4")
    a("v_add_u32 v17, %d, v17" % VS)

    a("s_waitcnt lgkmcnt(0)")
    a.ts()
    a("s_mul_i32 s9, s8, 86016")
    a("s_add_u32 s12, s12, s9")
    a("s_addc_u32 s13, s13, 0")
    a("s_lshl_b32 s9, s8, 4")
    a("s_lshr_b32 s25, s7, 1")
    a("s_add_u32 s9, s9, s25")
    a("s_mul_i32 s9, s9, 24576")
    a("s_add_u32 s14, s14, s9")
    a("s_addc_u32 s15, s15, 0")
    a("s_add_u32 s16, s16, s9")
    a("s_addc_u32 s17, s17, 0")
    a("s_add_u32 s26, s16, 196608")
    a("s_addc_u32 s27, s17, 0")
    a("s_add_u32 s32, s14, 196608")
    a("s_addc_u32 s33, s15, 0")
    a("s_lshl_b32 s9, s7, 9")
    a("s_add_u32 s22, s18, s9")
    a("s_addc_u32 s23, s19, 0")
    a("v_mov_b32 v2, v10")
    for j in range(12):
        a(f"global_load_dwordx4 {vr(20+4*j,4)}, v2, s[12:13]")
        if j < 11:
            a("v_add_u32 v2, 7168, v2")

    def wq_loads(setn):
        for j in range(4):
            a(f"global_load_dwordx4 {vr(124+16*setn+4*j,4)}, v12, s[22:23]")
            a("s_add_u32 s22, s22, 131072")
            a("s_addc_u32 s23, s23, 0")

    def wq_writes(setn, buf):
        for j in range(4):
            off = WB[buf] - WB[0] + ((j & 1) * 8 + (j >> 1) * 32) * WSTR
            a(f"ds_write_b128 v13, {vr(124+16*setn+4*j,4)} offset:{off}")

    wq_loads(0)
    wq_loads(1)
    for (base, p0, p1) in ((156, "s[16:17]", "s[26:27]"), (180, "s[14:15]", "s[32:33]")):
        for j in range(6):
            sb = p0 if j < 3 else p1
            if j % 3 == 0:
                a("v_mov_b32 v2, v16")
            else:
                a("v_add_u32 v2, 8192, v2")
            a(f"global_load_dwordx4 {vr(base+4*j,4)}, v2, {sb}")
    a("v_and_b32 v3, 15, v1")
    a("v_lshrrev_b32 v4, 4, v1")
    a("s_lshr_b32 s25, s24, 2")
    a("s_and_b32 s28, s24, 3")
    a("s_mul_i32 s29, s25, %d" % (48 * XSTR))
    a("v_mul_u32_u24 v5, %d, v3" % XSTR)
    a("v_lshlrev_b32 v6, 4, v4")
    a("v_add3_u32 v14, v5, v6, s29")
    a("v_lshrrev_b32 v5, 2, v3")
    a("v_lshl_add_u32 v5, v4, 2, v5")
    a("v_mul_u32_u24 v5, %d, v5" % WSTR)
    a("v_and_b32 v6, 3, v1")
    a("v_lshlrev_b32 v6, 3, v6")
    a("s_lshl_b32 s29, s28, 7")
    a("v_add3_u32 v15, v5, v6, s29")
    a("v_add_u32 v15, %d, v15" % WB[0])
    a("v_add_u32 v19, v5, v6")
    for j in range(12):
        a(f"s_waitcnt vmcnt({31-j})")
        if j < 8:
            a(f"ds_write_b128 v11, {vr(20+4*j,4)} offset:{j*8*XSTR}")
        else:
            a(f"ds_write_b128 v18, {vr(20+4*j,4)} offset:{(j-8)*8*XSTR}")
    a.ts()
    a("s_waitcnt vmcnt(16)")
    wq_writes(0, 0)
    a("s_waitcnt lgkmcnt(0)")
    for r in range(20, 68):
        a(f"v_mov_b32 v{r}, 0")
    a("s_barrier")
    a.ts()

    def frag_reads(c, ks, setn):
        buf = c & 1
        kstep = 2 * c + ks
        for qt in range(3):
            a(f"ds_read_b128 {vr(100+12*setn+4*qt,4)}, v14 offset:{qt*16*XSTR + kstep*64}")
        for dt in range(4):
            base = WB[buf] - WB[0] + ks * 32 * WSTR + dt * 32
            a(f"ds_read_b64_tr_b16 {vr(68+16*setn+4*dt,2)}, v15 offset:{base}")
            a(f"ds_read_b64_tr_b16 {vr(68+16*setn+4*dt+2,2)}, v15 offset:{base+16*WSTR}")

    def mfmas(setn):
        for dt in range(4):
            for qt in range(3):
                acc = 20 + (dt * 3 + qt) * 4
                a(f"v_mfma_f32_16x16x32_bf16 {vr(acc,4)}, {vr(68+16*setn+4*dt,4)}, {vr(100+12*setn+4*qt,4)}, {vr(acc,4)}")

    for c in range(7):
        a.c(f"---- chunk {c}")
        frag_reads(c, 0, 0)
        if c + 2 < 7:
            wq_loads(c & 1)
        a("s_waitcnt lgkmcnt(0)")
        frag_reads(c, 1, 1)
        mfmas(0)
        a("s_waitcnt lgkmcnt(0)")
        mfmas(1)
        if c < 6:
            if c == 0:
                a("s_waitcnt vmcnt(16)")
            elif c + 2 < 7:
                a("s_waitcnt vmcnt(4)")
            else:
                a("s_waitcnt vmcnt(0)")
            wq_writes((c + 1) & 1, (c + 1) & 1)
            a("s_waitcnt lgkmcnt(0)")
        a("s_barrier")
        a.ts()
    a("s_mul_i32 s29, s25, %d" % (48 * WSTR))
    a("s_lshl_b32 s30, s28, 7")
    a("s_add_u32 s29, s29, s30")
    a("v_mul_u32_u24 v5, %d, v3" % WSTR)
    a("v_lshlrev_b32 v6, 3, v4")
    a("v_add3_u32 v2, v5, v6, s29")
    a("v_add_u32 v18, %d, v17" % (KS - VS))
    for j in range(6):
        off = (j // 3) * 48 * WSTR + (j % 3) * 16 * WSTR
        a(f"ds_write_b128 v17, {vr(156+4*j,4)} offset:{off}")
        a(f"ds_write_b128 v18, {vr(180+4*j,4)} offset:{off}")
    for dt in range(4):
        for qt in range(3):
            acc = 20 + (dt * 3 + qt) * 4
            a(f"v_cvt_pk_bf16_f32 v6, v{acc}, v{acc+1}")
            a(f"v_cvt_pk_bf16_f32 v7, v{acc+2}, v{acc+3}")
            a(f"ds_write_b64 v2, v[6:7] offset:{qt*16*WSTR + dt*32}")
    a("s_cmp_lt_u32 s24, 6")
    a("s_cselect_b32 s31, 1, 0")
    a("s_cmp_ge_u32 s24, 3")
    a("s_cselect_b32 s25, 1, 0")
    a("s_mul_i32 s30, s25, 3")
    a("s_sub_u32 s28, s24, s30")
    a("s_waitcnt lgkmcnt(0)")
    a("s_barrier")
    a.ts()
    a("s_cmp_eq_u32 s31, 0")
    a("s_cbranch_scc1 k1_end")
    a("s_mul_i32 s29, s25, %d" % (48 * WSTR))
    a("v_mul_u32_u24 v5, %d, v3" % WSTR)
    a("v_lshlrev_b32 v6, 4, v4")
    a("v_add3_u32 v2, v5, v6, s29")
    a("v_add_u32 v8, %d, v2" % KS)
    a("s_mul_i32 s30, s28, %d" % (16 * WSTR))
    a("v_add_u32 v2, s30, v2")
    for s in range(8):
        a(f"ds_read_b128 {vr(204+4*s,4)}, v2 offset:{s*64}")
    for r in range(236, 248):
        a(f"v_mov_b32 v{r}, 0")
    a("s_waitcnt lgkmcnt(0)")
    for kt in range(3):
        for s in range(8):
            a(f"ds_read_b128 {vr(68+(kt*8+s)*4,4)}, v8 offset:{kt*16*WSTR + s*64}")
            if (kt * 8 + s) % 8 == 7:
                pass
        a("s_waitcnt lgkmcnt(0)")
        for s in range(8):
            a(f"v_mfma_f32_16x16x32_bf16 {vr(236+4*kt,4)}, {vr(68+(kt*8+s)*4,4)}, {vr(204+4*s,4)}, {vr(236+4*kt,4)}")
    a("v_add_u32 v19, s29, v19")
    a("v_add_u32 v19, %d, v19" % VS)
    a("s_nop 7")
    a("s_nop 1")
    a.ts()
    S = list(range(236, 248))
    for j in range(0, 12, 2):
        a(f"v_cvt_pk_bf16_f32 v6, v{S[j]}, v{S[j+1]}")
        a(f"v_lshlrev_b32 v{S[j]}, 16, v6")
        a(f"v_and_b32 v{S[j+1]}, 0xffff0000, v6")
    a(f"v_max3_f32 v6, v{S[0]}, v{S[1]}, v{S[2]}")
    for j in range(3, 11, 2):
        a(f"v_max3_f32 v6, v6, v{S[j]}, v{S[j+1]}")
    a(f"v_max_f32 v6, v6, v{S[11]}")
    a("v_mov_b32 v7, v6")
    a("s_nop 1")
    a("v_permlane32_swap_b32 v6, v7")
    a("v_max_f32 v6, v6, v7")
    a("v_mov_b32 v7, v6")
    a("s_nop 1")
    a("v_permlane16_swap_b32 v6, v7")
    a("v_max_f32 v6, v6, v7")
    import struct
    cbits = struct.unpack("<I", struct.pack("<f", 0.0625 * 1.4426950408889634))[0]
    a(f"s_mov_b32 s29, 0x{cbits:08x}")
    a("v_mul_f32 v6, s29, v6")
    for j in range(12):
        a(f"v_fma_f32 v{S[j]}, v{S[j]}, s29, -v6")
    for j in range(12):
        a(f"v_exp_f32 v{S[j]}, v{S[j]}")
    a("s_nop 0")
    a(f"v_add_f32 v6, v{S[0]}, v{S[1]}")
    for j in range(2, 12):
        a(f"v_add_f32 v6, v6, v{S[j]}")
    a("v_mov_b32 v7, v6")
    a("s_nop 1")
    a("v_permlane32_swap_b32 v6, v7")
    a("v_add_f32 v6, v6, v7")
    a("v_mov_b32 v7, v6")
    a("s_nop 1")
    a("v_permlane16_swap_b32 v6, v7")
    a("v_add_f32 v6, v6, v7")
    a("v_rcp_f32 v6, v6")
    a("s_nop 0")
    for j in range(12):
        a(f"v_mul_f32 v{S[j]}, v{S[j]}, v6")
    for j in range(6):
        a(f"v_cvt_pk_bf16_f32 v{248+j}, v{S[2*j]}, v{S[2*j+1]}")
    a.ts()
    for r in range(68, 132):
        a(f"v_mov_b32 v{r}, 0")

    def vreads(t):
        b = 204 + (t % 4) * 4
        a(f"ds_read_b64_tr_b16 {vr(b,2)}, v19 offset:{t*32}")
        a(f"ds_read_b64_tr_b16 {vr(b+2,2)}, v19 offset:{t*32 + 16*WSTR}")
        a(f"ds_read_b64_tr_b16 {vr(132+2*t,2)}, v19 offset:{t*32 + 32*WSTR}")

    for t in range(3):
        vreads(t)
    for t in range(16):
        if t + 3 < 16:
            vreads(t + 3)
            a("s_waitcnt lgkmcnt(9)")
        else:
            a(f"s_waitcnt lgkmcnt({3*(15-t)})")
        b = 204 + (t % 4) * 4
        a(f"v_mfma_f32_16x16x32_bf16 {vr(68+4*t,4)}, {vr(b,4)}, v[248:251], {vr(68+4*t,4)}")
    a("s_nop 7")
    for t in range(16):
        a(f"v_mfma_f32_16x16x16_bf16 {vr(68+4*t,4)}, {vr(132+2*t,2)}, v[252:253], {vr(68+4*t,4)}")
    a("s_mul_i32 s29, s6, 48")
    a("s_lshl_b32 s30, s8, 1")
    a("s_add_u32 s30, s30, s25")
    a("s_mul_i32 s30, s30, 3")
    a("s_add_u32 s29, s29, s30")
    a("s_add_u32 s29, s29, s28")
    a("s_lshl_b32 s29, s29, 7")
    a("s_lshl_b32 s30, s7, 3")
    a("s_add_u32 s29, s29, s30")
    a("s_lshl_b32 s29, s29, 10")
    a("s_add_u32 s20, s20, s29")
    a("s_addc_u32 s21, s21, 0")
    a("v_lshlrev_b32 v2, 4, v1")
    a("v_add_u32 v9, 4096, v2")
    a("s_nop 7")
    for u in range(8):
        t0, t1 = 68 + 8 * u, 68 + 8 * u + 4
        d = 204 + (u % 4) * 4
        a(f"v_cvt_pk_bf16_f32 v{d}, v{t0}, v{t0+1}")
        a(f"v_cvt_pk_bf16_f32 v{d+1}, v{t0+2}, v{t0+3}")
        a(f"v_cvt_pk_bf16_f32 v{d+2}, v{t1}, v{t1+1}")
        a(f"v_cvt_pk_bf16_f32 v{d+3}, v{t1+2}, v{t1+3}")
        if u < 4:
            a(f"global_store_dwordx4 v2, {vr(d,4)}, s[20:21] offset:{u*1024}")
        else:
            a(f"global_store_dwordx4 v9, {vr(d,4)}, s[20:21] offset:{(u-4)*1024}")
    if TS_ON:
        a("s_waitcnt vmcnt(0)")
    a.ts()
    a.ts_dump(0)
    a.lab("k1_end")
    a("s_endpgm")


W2STR = 480
K2BUF = 12288 + 64 * W2STR
K2_LDS = 2 * K2BUF


def gen_k2(a):
    a.lab("k2_kernel")
    a("s_cmp_ge_u32 s2, 256")
    a("s_cbranch_scc1 k2_end")
    a("s_and_b32 s3, s2, 7")
    a("s_lshr_b32 s4, s2, 3")
    a("s_lshr_b32 s6, s3, 2")
    a("s_and_b32 s5, s3, 3")
    a("s_lshl_b32 s5, s5, 1")
    a("s_bfe_u32 s7, s4, 0x10003")
    a("s_add_u32 s7, s7, s5")
    a("s_lshr_b32 s8, s4, 4")
    a("s_and_b32 s9, s4, 7")
    a("s_mul_i32 s10, s6, 40")
    a("s_add_u32 s10, s0, s10")
    a("s_addc_u32 s11, s1, 0")
    a("s_load_dwordx2 s[12:13], s[10:11], 32")
    a("s_load_dwordx2 s[16:17], s[0:1], 96")
    a("v_and_b32 v1, 63, v0")
    a("v_lshrrev_b32 v2, 6, v0")
    a("s_nop 0")
    a("v_readfirstlane_b32 s24, v2")
    a("s_mov_b32 s18, 2341")
    a("v_mul_lo_u32 v3, v0, s18")
    a("v_lshrrev_b32 v3, 16, v3")
    a("v_mul_u32_u24 v4, 28, v3")
    a("v_sub_u32 v4, v0, v4")
    a("v_lshlrev_b32 v4, 4, v4")
    a("v_mul_u32_u24 v5, 896, v3")
    a("v_add_u32 v10, v5, v4")
    a("v_mul_u32_u24 v5, %d, v3" % W2STR)
    a("v_add_u32 v11, v5, v4")
    a("v_add_u32 v11, 12288, v11")
    a("v_add_u32 v12, %d, v11" % K2BUF)
    a("s_min_u32 s25, s24, 5")
    a("v_lshlrev_b32 v13, 4, v1")
    a("s_lshl_b32 s18, s25, 11")
    a("v_add_u32 v14, s18, v13")
    a("v_add_u32 v15, %d, v14" % K2BUF)
    a("v_lshlrev_b32 v16, 4, v1")
    a("v_add_u32 v17, %d, v16" % K2BUF)
    a("v_and_b32 v3, 15, v1")
    a("v_lshrrev_b32 v4, 4, v1")
    a("v_lshrrev_b32 v5, 2, v3")
    a("v_lshl_add_u32 v5, v4, 2, v5")
    a("v_mul_u32_u24 v5, %d, v5" % W2STR)
    a("v_and_b32 v6, 3, v1")
    a("v_lshlrev_b32 v6, 3, v6")
    a("s_lshl_b32 s18, s24, 6")
    a("s_add_u32 s18, s18, 12288")
    a("v_add3_u32 v18, v5, v6, s18")
    a("v_add_u32 v19, %d, v18" % K2BUF)
    a("s_waitcnt lgkmcnt(0)")
    a.ts()
    a("s_mul_i32 s18, s7, %d" % (512 * 896))
    a("s_mul_i32 s19, s8, 448")
    a("s_add_u32 s18, s18, s19")
    a("s_add_u32 s12, s12, s18")
    a("s_addc_u32 s13, s13, 0")
    a("s_mul_i32 s18, s6, 48")
    a("s_mul_i32 s19, s9, 6")
    a("s_add_u32 s18, s18, s19")
    a("s_add_u32 s18, s18, s25")
    a("s_lshl_b32 s18, s18, 7")
    a("s_lshl_b32 s19, s7, 4")
    a("s_add_u32 s18, s18, s19")
    a("s_lshl_b32 s18, s18, 10")
    a("s_add_u32 s14, s16, s18")
    a("s_addc_u32 s15, s17, 0")
    a("s_lshl_b32 s18, s7, 1")
    a("s_add_u32 s18, s18, s6")
    a("s_lshl_b32 s18, s18, 3")
    a("s_add_u32 s18, s18, s9")
    a("s_lshl_b32 s18, s18, 1")
    a("s_add_u32 s18, s18, s8")
    a("s_mul_i32 s18, s18, 84")
    a("s_mul_i32 s19, s24, 12")
    a("s_add_u32 s18, s18, s19")
    a("s_lshl_b32 s18, s18, 10")
    a("s_add_u32 s18, s18, %d" % PW_OFF)
    a("s_add_u32 s20, s16, s18")
    a("s_addc_u32 s21, s17, 0")

    def loads(setn):
        b = 68 + 24 * setn
        for j in range(4):
            a(f"global_load_dwordx4 {vr(b+4*j,4)}, v10, s[12:13]")
            a("s_add_u32 s12, s12, 14336")
            a("s_addc_u32 s13, s13, 0")
        a(f"global_load_dwordx4 {vr(b+16,4)}, v13, s[14:15]")
        a(f"global_load_dwordx4 {vr(b+20,4)}, v13, s[14:15] offset:1024")
        a("v_add_u32 v13, 2048, v13")

    def writes(setn, buf):
        b = 68 + 24 * setn
        for j in range(4):
            a(f"ds_write_b128 v{11+buf}, {vr(b+4*j,4)} offset:{j*16*W2STR}")
        a(f"ds_write_b128 v{14+buf}, {vr(b+16,4)}")
        a(f"ds_write_b128 v{14+buf}, {vr(b+20,4)} offset:1024")

    loads(0)
    loads(1)
    for r in range(20, 68):
        a(f"v_mov_b32 v{r}, 0")
    a("s_waitcnt vmcnt(6)")
    writes(0, 0)
    a("s_waitcnt lgkmcnt(0)")
    a("s_barrier")
    a.ts()

    def frag_reads(buf, ks, fs):
        for qt in range(6):
            a(f"ds_read_b128 {vr(116+24*fs+4*qt,4)}, v{16+buf} offset:{(qt*2+ks)*1024}")
        for e in range(2):
            base = ks * 32 * W2STR + e * 32
            a(f"ds_read_b64_tr_b16 {vr(164+8*fs+4*e,2)}, v{18+buf} offset:{base}")
            a(f"ds_read_b64_tr_b16 {vr(164+8*fs+4*e+2,2)}, v{18+buf} offset:{base+16*W2STR}")

    def mfmas(fs):
        for e in range(2):
            for qt in range(6):
                acc = 20 + (e * 6 + qt) * 4
                a(f"v_mfma_f32_16x16x32_bf16 {vr(acc,4)}, {vr(164+8*fs+4*e,4)}, {vr(116+24*fs+4*qt,4)}, {vr(acc,4)}")

    for c in range(8):
        buf = c & 1
        frag_reads(buf, 0, 0)
        if c + 2 < 8:
            loads(c & 1)
        a("s_waitcnt lgkmcnt(0)")
        frag_reads(buf, 1, 1)
        mfmas(0)
        a("s_waitcnt lgkmcnt(0)")
        mfmas(1)
        if c < 7:
            if c + 2 < 8:
                a("s_waitcnt vmcnt(6)")
            else:
                a("s_waitcnt vmcnt(0)")
            writes((c + 1) & 1, (c + 1) & 1)
            a("s_waitcnt lgkmcnt(0)")
            a("s_barrier")
        if c % 2 == 1:
            a.ts()
    a("v_lshlrev_b32 v2, 4, v1")
    a("v_add_u32 v3, 4096, v2")
    a("v_add_u32 v4, 8192, v2")
    a("s_nop 7")
    for t in range(12):
        a(f"global_store_dwordx4 v{2+t//4}, {vr(20+4*t,4)}, s[20:21] offset:{(t%4)*1024}")
    if TS_ON:
        a("s_waitcnt vmcnt(0)")
    a.ts()
    a.ts_dump(0)
    a.lab("k2_end")
    a("s_endpgm")


def gen_k3(a):
    a.lab("k3_kernel")
    a("s_cmp_ge_u32 s2, 336")
    a("s_cbranch_scc1 k3_end")
    a("s_load_dwordx2 s[14:15], s[0:1], 80")
    a("s_load_dwordx2 s[16:17], s[0:1], 96")
    a("v_and_b32 v1, 63, v0")
    a("v_lshrrev_b32 v2, 6, v0")
    a("s_nop 0")
    a("v_readfirstlane_b32 s24, v2")
    a("s_lshl_b32 s3, s2, 3")
    a("s_add_u32 s3, s3, s24")
    a("s_mul_i32 s4, s3, 3121")
    a("s_lshr_b32 s4, s4, 18")
    a("s_mul_i32 s5, s4, 84")
    a("s_sub_u32 s5, s3, s5")
    a("s_mul_i32 s6, s5, 43")
    a("s_lshr_b32 s6, s6, 8")
    a("s_mul_i32 s7, s6, 6")
    a("s_sub_u32 s7, s5, s7")
    a("s_and_b32 s8, s4, 1")
    a("s_bfe_u32 s9, s4, 0x30001")
    a("s_lshr_b32 s10, s4, 4")
    a("s_mul_i32 s11, s9, 96")
    a("s_lshl_b32 s12, s7, 4")
    a("s_add_u32 s11, s11, s12")
    a("s_mul_i32 s11, s11, 1792")
    a("s_mul_i32 s12, s10, 896")
    a("s_add_u32 s11, s11, s12")
    a("s_mul_i32 s12, s8, 448")
    a("s_add_u32 s11, s11, s12")
    a("s_lshl_b32 s12, s6, 5")
    a("s_add_u32 s11, s11, s12")
    a("s_lshl_b32 s12, s3, 10")
    a("s_add_u32 s12, s12, %d" % PW_OFF)
    a("v_lshlrev_b32 v2, 4, v1")
    a("v_and_b32 v3, 15, v1")
    a("v_lshrrev_b32 v4, 4, v1")
    a("v_mul_u32_u24 v5, 1792, v3")
    a("v_lshl_add_u32 v5, v4, 3, v5")
    a("s_waitcnt lgkmcnt(0)")
    a("s_add_u32 s16, s16, s12")
    a("s_addc_u32 s17, s17, 0")
    a("s_add_u32 s14, s14, s11")
    a("s_addc_u32 s15, s15, 0")
    for g in range(8):
        a(f"global_load_dwordx4 {vr(8+4*g,4)}, v2, s[16:17]")
        if g < 7:
            a("s_add_u32 s16, s16, %d" % (2688 * 1024))
            a("s_addc_u32 s17, s17, 0")
    for g in range(1, 8):
        a(f"s_waitcnt vmcnt({7-g})")
        for r in range(4):
            a(f"v_add_f32 v{8+r}, v{8+r}, v{8+4*g+r}")
    a("v_cvt_pk_bf16_f32 v6, v8, v9")
    a("v_cvt_pk_bf16_f32 v7, v10, v11")
    a("global_store_dwordx2 v5, v[6:7], s[14:15]")
    a.lab("k3_end")
    a("s_endpgm")


def kd(name, vgpr, sgpr):
    acc = (vgpr + 3) // 4 * 4
    return f""".amdhsa_kernel {name}
  .amdhsa_next_free_vgpr {vgpr}
  .amdhsa_next_free_sgpr {sgpr}
  .amdhsa_accum_offset {acc}
  .amdhsa_group_segment_fixed_size 0
  .amdhsa_kernarg_size 104
  .amdhsa_user_sgpr_count 2
  .amdhsa_user_sgpr_kernarg_segment_ptr 1
  .amdhsa_system_sgpr_workgroup_id_x 1
.end_amdhsa_kernel
"""


def main():
    global TS_ON
    if len(sys.argv) > 2 and sys.argv[2] == "ts":
        TS_ON = True
    out = HEADER
    out += f"; @launch kernel=k1_kernel grid=(256,1,1) block=(512,1,1) lds={K1_LDS}\n"
    out += f"; @launch kernel=k2_kernel grid=(256,1,1) block=(448,1,1) lds={K2_LDS}\n"
    out += f"; @launch kernel=k3_kernel grid=(336,1,1) block=(512,1,1) lds=0\n"
    out += '.amdgcn_target "amdgcn-amd-amdhsa--gfx950"\n.text\n'
    for nm, g in (("k1_kernel", gen_k1), ("k2_kernel", gen_k2), ("k3_kernel", gen_k3)):
        a = A()
        out += f".globl {nm}\n.p2align 8\n.type {nm},@function\n"
        g(a)
        out += a.text()
    sg = 102 if TS_ON else 40
    out += '.section .rodata,"a"\n.p2align 6\n'
    out += kd("k1_kernel", 256, sg)
    out += ".p2align 6\n"
    out += kd("k2_kernel", 180, sg)
    out += ".p2align 6\n"
    out += kd("k3_kernel", 40, 40)
    path = sys.argv[1] if len(sys.argv) > 1 else f"cdna_kernels/{NAME}.s"
    open(path, "w").write(out)


if __name__ == "__main__":
    main()
```

```python
import sys
import os
EXP = os.environ.get('EXP','')

NAME = "concat_heads__gqa_block_cached__gqa_block_cached__near_ridge"

HEADER = """; Kernarg layout for this problem (104 bytes, ptrs only, base s[0:1]):
"""


TS_ON = False


class A:
    def __init__(self):
        self.l = []
        self.nts = 0

    def ts(self):
        if not TS_ON:
            return
        n = self.nts
        self.nts += 1
        assert n < 30
        self.l.append(f"    s_memtime s[{40+2*n}:{41+2*n}]")
        self.l.append("    s_waitcnt lgkmcnt(0)")

    def ts_dump(self, wgsel):
        if not TS_ON:
            return
        self.l.append(f"    s_cmp_lg_u32 s2, {wgsel}")
        self.l.append("    s_cbranch_scc1 Lnodump%d" % id(self))
        self.l.append("    s_cmp_lg_u32 s24, 0")
        self.l.append("    s_cbranch_scc1 Lnodump%d" % id(self))
        self.l.append("    s_load_dwordx2 s[34:35], s[0:1], 88")
        self.l.append("    s_waitcnt lgkmcnt(0)")
        self.l.append("    v_mov_b32 v2, 0")
        for n in range(self.nts):
            self.l.append(f"    s_sub_u32 s36, s{40+2*n}, s40")
            self.l.append(f"    v_mov_b32 v3, s36")
            self.l.append(f"    global_store_dword v2, v3, s[34:35] offset:{4*n}")
        self.l.append("Lnodump%d:" % id(self))

    def __call__(self, s):
        self.l.append("    " + s)

    def lab(self, s):
        self.l.append(s + ":")

    def c(self, s):
        self.l.append("    ; " + s)

    def text(self):
        return "\n".join(self.l) + "\n"


def vr(b, n):
    return f"v[{b}:{b+n-1}]"


def sr(b, n):
    return f"s[{b}:{b+n-1}]"


XSTR = 928
WSTR = 544
XS = 0
WB = [96 * XSTR, 96 * XSTR + 64 * WSTR]
K1_LDS = 96 * XSTR + 2 * 64 * WSTR
QS = 0
VS = 96 * WSTR
KS = 2 * 96 * WSTR
PW_OFF = 16777216


def gen_k1(a):
    WBS = 32 * WSTR
    a.lab("k1_kernel")
    a("s_cmp_ge_u32 s2, 256")
    a("s_cbranch_scc1 k1_end")
    a("s_and_b32 s3, s2, 7")
    a("s_lshr_b32 s4, s2, 3")
    a("s_lshl_b32 s5, s3, 2")
    a("s_lshr_b32 s6, s4, 3")
    a("s_add_u32 s5, s5, s6")
    a("s_lshr_b32 s6, s5, 4")
    a("s_and_b32 s7, s5, 15")
    a("s_and_b32 s8, s4, 7")
    a("s_mul_i32 s9, s6, 40")
    a("s_add_u32 s10, s0, s9")
    a("s_addc_u32 s11, s1, 0")
    a("s_load_dwordx8 s[12:19], s[10:11], 0")
    a("s_load_dwordx2 s[20:21], s[0:1], 96")
    a("v_and_b32 v1, 63, v0")
    a("v_lshrrev_b32 v2, 6, v0")
    a("s_nop 0")
    a("v_readfirstlane_b32 s24, v2")
    a("v_subrev_u32 v3, 64, v0")
    a("v_cmp_gt_u32 vcc, 448, v0")
    a("s_nop 1")
    a("v_cndmask_b32 v2, v3, v0, vcc")
    a("s_mov_b32 s9, 1171")
    a("v_mul_lo_u32 v3, v2, s9")
    a("v_lshrrev_b32 v3, 16, v3")
    a("v_mul_u32_u24 v4, 56, v3")
    a("v_sub_u32 v4, v2, v4")
    a("v_lshlrev_b32 v4, 4, v4")
    a("v_mul_u32_u24 v5, 896, v3")
    a("v_add_u32 v10, v5, v4")
    a("v_mul_u32_u24 v5, %d, v3" % XSTR)
    a("v_add_u32 v11, v5, v4")
    a("v_add_u32 v18, %d, v11" % (8 * 8 * XSTR))
    a("v_lshrrev_b32 v3, 5, v0")
    a("v_and_b32 v4, 31, v0")
    a("v_lshlrev_b32 v4, 4, v4")
    a("v_lshlrev_b32 v5, 13, v3")
    a("v_add_u32 v12, v5, v4")
    a("v_bfe_u32 v5, v3, 2, 1")
    a("v_lshlrev_b32 v5, 4, v5")
    a("v_lshrrev_b32 v6, 3, v3")
    a("v_lshlrev_b32 v6, 2, v6")
    a("v_add_u32 v5, v5, v6")
    a("v_and_b32 v6, 3, v3")
    a("v_add_u32 v5, v5, v6")
    a("v_mul_u32_u24 v5, %d, v5" % WSTR)
    a("v_add_u32 v13, v5, v4")
    a("v_add_u32 v13, %d, v13" % WB[0])
    a("v_lshlrev_b32 v16, 4, v0")
    a("v_mul_u32_u24 v5, %d, v3" % WSTR)
    a("v_add_u32 v17, v5, v4")
    a("v_add_u32 v17, %d, v17" % VS)
    a("s_waitcnt lgkmcnt(0)")
    a.ts()
    a("s_mul_i32 s9, s8, 86016")
    a("s_add_u32 s12, s12, s9")
    a("s_addc_u32 s13, s13, 0")
    a("s_lshl_b32 s9, s8, 4")
    a("s_lshr_b32 s25, s7, 1")
    a("s_add_u32 s9, s9, s25")
    a("s_mul_i32 s9, s9, 24576")
    a("s_add_u32 s14, s14, s9")
    a("s_addc_u32 s15, s15, 0")
    a("s_add_u32 s16, s16, s9")
    a("s_addc_u32 s17, s17, 0")
    a("s_add_u32 s26, s16, 196608")
    a("s_addc_u32 s27, s17, 0")
    a("s_add_u32 s32, s14, 196608")
    a("s_addc_u32 s33, s15, 0")
    a("s_lshl_b32 s9, s7, 9")
    a("s_add_u32 s22, s18, s9")
    a("s_addc_u32 s23, s19, 0")

    def wq_loads(base):
        for j in range(2):
            a(f"global_load_dwordx4 {vr(base+4*j,4)}, v12, s[22:23]")
            a("s_add_u32 s22, s22, 131072")
            a("s_addc_u32 s23, s23, 0")

    def wq_writes(base, vaddr, off):
        for j in range(2):
            a(f"ds_write_b128 {vaddr}, {vr(base+4*j,4)} offset:{off + j*8*WSTR}")

    wq_loads(124)
    wq_loads(132)
    a("v_mov_b32 v2, v10")
    for j in range(12):
        a(f"global_load_dwordx4 {vr(20+4*j,4)}, v2, s[12:13]")
        if j < 11:
            a("v_add_u32 v2, 7168, v2")
    for c in range(2, 14):
        wq_loads(124 + 8 * c)
    a("v_and_b32 v3, 15, v1")
    a("v_lshrrev_b32 v4, 4, v1")
    a("s_lshr_b32 s25, s24, 2")
    a("s_and_b32 s28, s24, 3")
    a("s_mul_i32 s29, s25, %d" % (48 * XSTR))
    a("v_mul_u32_u24 v5, %d, v3" % XSTR)
    a("v_lshlrev_b32 v6, 4, v4")
    a("v_add3_u32 v14, v5, v6, s29")
    a("v_lshrrev_b32 v5, 2, v3")
    a("v_lshl_add_u32 v5, v4, 2, v5")
    a("v_mul_u32_u24 v5, %d, v5" % WSTR)
    a("v_and_b32 v6, 3, v1")
    a("v_lshlrev_b32 v6, 3, v6")
    a("s_lshl_b32 s29, s28, 7")
    a("v_add3_u32 v15, v5, v6, s29")
    a("v_add_u32 v15, %d, v15" % WB[0])
    a("v_add_u32 v19, v5, v6")
    a("s_waitcnt vmcnt(36)")
    wq_writes(124, "v13", 0)
    wq_writes(132, "v13", WBS)
    for j in range(12):
        a(f"s_waitcnt vmcnt({35-j})")
        if j < 8:
            a(f"ds_write_b128 v11, {vr(20+4*j,4)} offset:{j*8*XSTR}")
        else:
            a(f"ds_write_b128 v18, {vr(20+4*j,4)} offset:{(j-8)*8*XSTR}")
    a.ts()
    a("s_waitcnt lgkmcnt(0)")
    for r in range(20, 68):
        a(f"v_mov_b32 v{r}, 0")
    a("s_barrier")
    a.ts()

    def frag_reads(fs, step):
        for qt in range(3):
            a(f"ds_read_b128 {vr(100+12*fs+4*qt,4)}, v14 offset:{qt*16*XSTR + step*64}")
        aoff = (step % 4) * WBS
        for dt in range(4):
            a(f"ds_read_b64_tr_b16 {vr(68+16*fs+4*dt,2)}, v15 offset:{aoff + dt*32}")
            a(f"ds_read_b64_tr_b16 {vr(68+16*fs+4*dt+2,2)}, v15 offset:{aoff + dt*32 + 16*WSTR}")

    def mfmas(fs, lo, hi):
        lst = [(dt, qt) for dt in range(4) for qt in range(3)]
        for (dt, qt) in lst[lo:hi]:
            acc = 20 + (dt * 3 + qt) * 4
            a(f"v_mfma_f32_16x16x32_bf16 {vr(acc,4)}, {vr(68+16*fs+4*dt,4)}, {vr(100+12*fs+4*qt,4)}, {vr(acc,4)}")

    frag_reads(0, 0)
    a("s_waitcnt lgkmcnt(0)")
    KVSTEP = 4
    kv_issued = False
    for st in range(14):
        fs = st & 1
        if st + 1 < 14:
            frag_reads(1 - fs, st + 1)
        if st == 13:
            a("v_add_u32 v18, %d, v17" % (KS - VS))
        mfmas(fs, 0, 6)
        if st + 2 < 14:
            younger = 2 * (13 - (st + 2)) + (12 if kv_issued else 0)
            a(f"s_waitcnt vmcnt({younger})")
            wq_writes(124 + 8 * (st + 2), "v13", ((st + 2) % 4) * WBS)
        if st == KVSTEP:
            for (base, p0, p1) in ((124, "s[16:17]", "s[26:27]"), (148, "s[14:15]", "s[32:33]")):
                for j in range(6):
                    sb = p0 if j < 3 else p1
                    if j % 3 == 0:
                        a("v_mov_b32 v2, v16")
                    else:
                        a("v_add_u32 v2, 8192, v2")
                    a(f"global_load_dwordx4 {vr(base+4*j,4)}, v2, {sb}")
            kv_issued = True
        if st == 13:
            a("s_waitcnt vmcnt(0)")
            for j in range(6):
                off = (j // 3) * 48 * WSTR + (j % 3) * 16 * WSTR
                a(f"ds_write_b128 v17, {vr(124+4*j,4)} offset:{off}")
                a(f"ds_write_b128 v18, {vr(148+4*j,4)} offset:{off}")
        mfmas(fs, 6, 12)
        if st < 13:
            a("s_waitcnt lgkmcnt(0)")
            a("s_barrier")
        if st in (4, 9, 12):
            a.ts()
    a("s_mul_i32 s29, s25, %d" % (48 * WSTR))
    a("s_lshl_b32 s30, s28, 7")
    a("s_add_u32 s29, s29, s30")
    a("v_mul_u32_u24 v5, %d, v3" % WSTR)
    a("v_lshlrev_b32 v6, 3, v4")
    a("v_add3_u32 v2, v5, v6, s29")
    a("s_nop 4")
    for dt in range(4):
        for qt in range(3):
            acc = 20 + (dt * 3 + qt) * 4
            d = 6 + 2 * ((dt * 3 + qt) % 2)
            a(f"v_cvt_pk_bf16_f32 v{d}, v{acc}, v{acc+1}")
            a(f"v_cvt_pk_bf16_f32 v{d+1}, v{acc+2}, v{acc+3}")
            a(f"ds_write_b64 v2, v[{d}:{d+1}] offset:{qt*16*WSTR + dt*32}")
    a("s_cmp_lt_u32 s24, 6")
    a("s_cselect_b32 s31, 1, 0")
    a("s_cmp_ge_u32 s24, 3")
    a("s_cselect_b32 s25, 1, 0")
    a("s_mul_i32 s30, s25, 3")
    a("s_sub_u32 s28, s24, s30")
    a("s_waitcnt lgkmcnt(0)")
    a("s_barrier")
    a.ts()
    a("s_cmp_eq_u32 s31, 0")
    a("s_cbranch_scc1 k1_end")
    a("s_mul_i32 s29, s25, %d" % (48 * WSTR))
    a("v_mul_u32_u24 v5, %d, v3" % WSTR)
    a("v_lshlrev_b32 v6, 4, v4")
    a("v_add3_u32 v2, v5, v6, s29")
    a("v_add_u32 v8, %d, v2" % KS)
    a("s_mul_i32 s30, s28, %d" % (16 * WSTR))
    a("v_add_u32 v2, s30, v2")
    for s in range(8):
        a(f"ds_read_b128 {vr(204+4*s,4)}, v2 offset:{s*64}")
    for r in range(236, 248):
        a(f"v_mov_b32 v{r}, 0")
    a("s_waitcnt lgkmcnt(0)")
    for kt in range(3):
        for s in range(8):
            a(f"ds_read_b128 {vr(68+(kt*8+s)*4,4)}, v8 offset:{kt*16*WSTR + s*64}")
            if (kt * 8 + s) % 8 == 7:
                pass
        a("s_waitcnt lgkmcnt(0)")
        for s in range(8):
            a(f"v_mfma_f32_16x16x32_bf16 {vr(236+4*kt,4)}, {vr(68+(kt*8+s)*4,4)}, {vr(204+4*s,4)}, {vr(236+4*kt,4)}")
    a("v_add_u32 v19, s29, v19")
    a("v_add_u32 v19, %d, v19" % VS)
    a("s_nop 7")
    a("s_nop 1")
    a.ts()
    S = list(range(236, 248))
    for j in range(0, 12, 2):
        a(f"v_cvt_pk_bf16_f32 v6, v{S[j]}, v{S[j+1]}")
        a(f"v_lshlrev_b32 v{S[j]}, 16, v6")
        a(f"v_and_b32 v{S[j+1]}, 0xffff0000, v6")
    a(f"v_max3_f32 v6, v{S[0]}, v{S[1]}, v{S[2]}")
    for j in range(3, 11, 2):
        a(f"v_max3_f32 v6, v6, v{S[j]}, v{S[j+1]}")
    a(f"v_max_f32 v6, v6, v{S[11]}")
    a("v_mov_b32 v7, v6")
    a("s_nop 1")
    a("v_permlane32_swap_b32 v6, v7")
    a("v_max_f32 v6, v6, v7")
    a("v_mov_b32 v7, v6")
    a("s_nop 1")
    a("v_permlane16_swap_b32 v6, v7")
    a("v_max_f32 v6, v6, v7")
    import struct
    cbits = struct.unpack("<I", struct.pack("<f", 0.0625 * 1.4426950408889634))[0]
    a(f"s_mov_b32 s29, 0x{cbits:08x}")
    a("v_mul_f32 v6, s29, v6")
    for j in range(12):
        a(f"v_fma_f32 v{S[j]}, v{S[j]}, s29, -v6")
    for j in range(12):
        a(f"v_exp_f32 v{S[j]}, v{S[j]}")
    a("s_nop 0")
    a(f"v_add_f32 v6, v{S[0]}, v{S[1]}")
    for j in range(2, 12):
        a(f"v_add_f32 v6, v6, v{S[j]}")
    a("v_mov_b32 v7, v6")
    a("s_nop 1")
    a("v_permlane32_swap_b32 v6, v7")
    a("v_add_f32 v6, v6, v7")
    a("v_mov_b32 v7, v6")
    a("s_nop 1")
    a("v_permlane16_swap_b32 v6, v7")
    a("v_add_f32 v6, v6, v7")
    a("v_rcp_f32 v6, v6")
    a("s_nop 0")
    for j in range(12):
        a(f"v_mul_f32 v{S[j]}, v{S[j]}, v6")
    for j in range(6):
        a(f"v_cvt_pk_bf16_f32 v{248+j}, v{S[2*j]}, v{S[2*j+1]}")
    a.ts()
    for r in range(68, 132):
        a(f"v_mov_b32 v{r}, 0")

    def vreads(t):
        b = 204 + (t % 4) * 4
        a(f"ds_read_b64_tr_b16 {vr(b,2)}, v19 offset:{t*32}")
        a(f"ds_read_b64_tr_b16 {vr(b+2,2)}, v19 offset:{t*32 + 16*WSTR}")
        a(f"ds_read_b64_tr_b16 {vr(132+2*t,2)}, v19 offset:{t*32 + 32*WSTR}")

    for t in range(3):
        vreads(t)
    for t in range(16):
        if t + 3 < 16:
            vreads(t + 3)
            a("s_waitcnt lgkmcnt(9)")
        else:
            a(f"s_waitcnt lgkmcnt({3*(15-t)})")
        b = 204 + (t % 4) * 4
        a(f"v_mfma_f32_16x16x32_bf16 {vr(68+4*t,4)}, {vr(b,4)}, v[248:251], {vr(68+4*t,4)}")
    a("s_nop 7")
    for t in range(16):
        a(f"v_mfma_f32_16x16x16_bf16 {vr(68+4*t,4)}, {vr(132+2*t,2)}, v[252:253], {vr(68+4*t,4)}")
    a("s_mul_i32 s29, s6, 48")
    a("s_lshl_b32 s30, s8, 1")
    a("s_add_u32 s30, s30, s25")
    a("s_mul_i32 s30, s30, 3")
    a("s_add_u32 s29, s29, s30")
    a("s_add_u32 s29, s29, s28")
    a("s_lshl_b32 s29, s29, 7")
    a("s_lshl_b32 s30, s7, 3")
    a("s_add_u32 s29, s29, s30")
    a("s_lshl_b32 s29, s29, 10")
    a("s_add_u32 s20, s20, s29")
    a("s_addc_u32 s21, s21, 0")
    a("v_lshlrev_b32 v2, 4, v1")
    a("v_add_u32 v9, 4096, v2")
    a("s_nop 7")
    for u in range(8):
        t0, t1 = 68 + 8 * u, 68 + 8 * u + 4
        d = 204 + (u % 4) * 4
        a(f"v_cvt_pk_bf16_f32 v{d}, v{t0}, v{t0+1}")
        a(f"v_cvt_pk_bf16_f32 v{d+1}, v{t0+2}, v{t0+3}")
        a(f"v_cvt_pk_bf16_f32 v{d+2}, v{t1}, v{t1+1}")
        a(f"v_cvt_pk_bf16_f32 v{d+3}, v{t1+2}, v{t1+3}")
        if u < 4:
            a(f"global_store_dwordx4 v2, {vr(d,4)}, s[20:21] offset:{u*1024}")
        else:
            a(f"global_store_dwordx4 v9, {vr(d,4)}, s[20:21] offset:{(u-4)*1024}")
    if TS_ON:
        a("s_waitcnt vmcnt(0)")
    a.ts()
    a.ts_dump(0)
    a.lab("k1_end")
    a("s_endpgm")


W2STR = 448
K2BUF = 6144 + 32 * W2STR
K2NB = 6
K2_LDS = K2NB * K2BUF


def gen_k2(a):
    NB = K2NB
    a.lab("k2_kernel")
    a("s_cmp_ge_u32 s2, 256")
    a("s_cbranch_scc1 k2_end")
    a("s_and_b32 s3, s2, 7")
    a("s_lshr_b32 s4, s2, 3")
    a("s_lshr_b32 s6, s3, 2")
    a("s_and_b32 s5, s3, 3")
    a("s_lshl_b32 s5, s5, 1")
    a("s_bfe_u32 s7, s4, 0x10003")
    a("s_add_u32 s7, s7, s5")
    a("s_lshr_b32 s8, s4, 4")
    a("s_and_b32 s9, s4, 7")
    a("s_mul_i32 s10, s6, 40")
    a("s_add_u32 s10, s0, s10")
    a("s_addc_u32 s11, s1, 0")
    a("s_load_dwordx2 s[12:13], s[10:11], 32")
    a("s_load_dwordx2 s[16:17], s[0:1], 96")
    a("v_and_b32 v1, 63, v0")
    a("v_lshrrev_b32 v2, 6, v0")
    a("s_nop 0")
    a("v_readfirstlane_b32 s24, v2")
    a("s_mov_b32 s18, 2341")
    a("v_mul_lo_u32 v3, v0, s18")
    a("v_lshrrev_b32 v3, 16, v3")
    a("v_mul_u32_u24 v4, 28, v3")
    a("v_sub_u32 v4, v0, v4")
    a("v_lshlrev_b32 v4, 4, v4")
    a("v_mul_u32_u24 v5, 896, v3")
    a("v_add_u32 v10, v5, v4")
    a("v_add_u32 v11, %d, v10" % (16 * 896))
    a("s_min_u32 s25, s24, 5")
    a("v_lshlrev_b32 v13, 4, v1")
    a("v_lshlrev_b32 v16, 4, v1")
    a("v_and_b32 v3, 15, v1")
    a("v_lshrrev_b32 v4, 4, v1")
    a("v_lshrrev_b32 v5, 2, v3")
    a("v_lshl_add_u32 v5, v4, 2, v5")
    a("v_mul_u32_u24 v5, %d, v5" % W2STR)
    a("v_and_b32 v6, 3, v1")
    a("v_lshlrev_b32 v6, 3, v6")
    a("s_lshl_b32 s18, s24, 6")
    a("s_add_u32 s18, s18, 6144")
    a("v_add3_u32 v18, v5, v6, s18")
    a("v_add_u32 v2, %d, v16" % (3 * K2BUF))
    a("v_add_u32 v3, %d, v18" % (3 * K2BUF))
    a("s_lshl_b32 s30, s25, 10")
    a("s_lshl_b32 s31, s24, 10")
    a("s_add_u32 s31, s31, 6144")
    a("s_add_u32 s32, s31, 7168")
    a("s_waitcnt lgkmcnt(0)")
    a.ts()
    a("s_mul_i32 s18, s7, %d" % (512 * 896))
    a("s_mul_i32 s19, s8, 448")
    a("s_add_u32 s18, s18, s19")
    a("s_add_u32 s12, s12, s18")
    a("s_addc_u32 s13, s13, 0")
    a("s_mul_i32 s18, s6, 48")
    a("s_mul_i32 s19, s9, 6")
    a("s_add_u32 s18, s18, s19")
    a("s_add_u32 s18, s18, s25")
    a("s_lshl_b32 s18, s18, 7")
    a("s_lshl_b32 s19, s7, 4")
    a("s_add_u32 s18, s18, s19")
    a("s_lshl_b32 s18, s18, 10")
    a("s_add_u32 s14, s16, s18")
    a("s_addc_u32 s15, s17, 0")
    a("s_lshl_b32 s18, s7, 1")
    a("s_add_u32 s18, s18, s6")
    a("s_lshl_b32 s18, s18, 3")
    a("s_add_u32 s18, s18, s9")
    a("s_lshl_b32 s18, s18, 1")
    a("s_add_u32 s18, s18, s8")
    a("s_mul_i32 s18, s18, 84")
    a("s_mul_i32 s19, s24, 12")
    a("s_add_u32 s18, s18, s19")
    a("s_lshl_b32 s18, s18, 10")
    a("s_add_u32 s18, s18, %d" % PW_OFF)
    a("s_add_u32 s20, s16, s18")
    a("s_addc_u32 s21, s17, 0")

    def dma(c):
        if 'noload' in EXP:
            return
        boff = (c % NB) * K2BUF
        a(f"s_add_u32 m0, s31, {boff}")
        a("s_nop 0")
        a("global_load_lds_dwordx4 v10, s[12:13]")
        a(f"s_add_u32 m0, s32, {boff}")
        a("s_nop 0")
        a("global_load_lds_dwordx4 v11, s[12:13]")
        a(f"s_add_u32 m0, s30, {boff}")
        a("s_add_u32 s12, s12, 28672")
        a("s_addc_u32 s13, s13, 0")
        a("global_load_lds_dwordx4 v13, s[14:15]")
        a("v_add_u32 v13, 1024, v13")

    for c in range(NB):
        dma(c)
    for r in range(20, 68):
        a(f"v_mov_b32 v{r}, 0")
    a(f"s_waitcnt vmcnt({3*(NB-2)})")
    a("s_barrier")
    a.ts()

    def frag_reads(fs, step):
        if 'noread' in EXP:
            return
        buf = step % NB
        vb, va = ("v16", "v18") if buf < 3 else ("v2", "v3")
        off = (buf % 3) * K2BUF
        for qt in range(6):
            a(f"ds_read_b128 {vr(68+24*fs+4*qt,4)}, {vb} offset:{off + qt*1024}")
        for e in range(2):
            a(f"ds_read_b64_tr_b16 {vr(116+8*fs+4*e,2)}, {va} offset:{off + e*32}")
            a(f"ds_read_b64_tr_b16 {vr(116+8*fs+4*e+2,2)}, {va} offset:{off + e*32 + 16*W2STR}")

    def mfmas(fs, lo, hi):
        if 'nomfma' in EXP:
            return
        lst = [(e, qt) for e in range(2) for qt in range(6)]
        for (e, qt) in lst[lo:hi]:
            acc = 20 + (e * 6 + qt) * 4
            a(f"v_mfma_f32_16x16x32_bf16 {vr(acc,4)}, {vr(116+8*fs+4*e,4)}, {vr(68+24*fs+4*qt,4)}, {vr(acc,4)}")

    frag_reads(0, 0)
    a("s_waitcnt lgkmcnt(0)")
    a("s_barrier")
    for st in range(16):
        fs = st & 1
        if st + 1 < 16:
            frag_reads(1 - fs, st + 1)
        if st + NB < 16:
            dma(st + NB)
        mfmas(fs, 0, 12)
        if st < 15:
            last = min(15, st + NB)
            if st + 2 <= 15:
                a(f"s_waitcnt vmcnt({3*max(0,last-(st+2))}) lgkmcnt(0)")
            else:
                a("s_waitcnt lgkmcnt(0)")
            if st < 14:
                a("s_barrier")
        if st % 4 == 3:
            a.ts()
    a("v_lshlrev_b32 v2, 4, v1")
    a("v_add_u32 v3, 4096, v2")
    a("v_add_u32 v4, 8192, v2")
    a("s_nop 7")
    for t in range(12):
        a(f"global_store_dwordx4 v{2+t//4}, {vr(20+4*t,4)}, s[20:21] offset:{(t%4)*1024}")
    if TS_ON:
        a("s_waitcnt vmcnt(0)")
    a.ts()
    a.ts_dump(0)
    a.lab("k2_end")
    a("s_endpgm")


def gen_k3(a):
    a.lab("k3_kernel")
    a("s_cmp_ge_u32 s2, 336")
    a("s_cbranch_scc1 k3_end")
    a("s_load_dwordx2 s[14:15], s[0:1], 80")
    a("s_load_dwordx2 s[16:17], s[0:1], 96")
    a("v_and_b32 v1, 63, v0")
    a("v_lshrrev_b32 v2, 6, v0")
    a("s_nop 0")
    a("v_readfirstlane_b32 s24, v2")
    a("s_lshl_b32 s3, s2, 3")
    a("s_add_u32 s3, s3, s24")
    a("s_mul_i32 s4, s3, 3121")
    a("s_lshr_b32 s4, s4, 18")
    a("s_mul_i32 s5, s4, 84")
    a("s_sub_u32 s5, s3, s5")
    a("s_mul_i32 s6, s5, 43")
    a("s_lshr_b32 s6, s6, 8")
    a("s_mul_i32 s7, s6, 6")
    a("s_sub_u32 s7, s5, s7")
    a("s_and_b32 s8, s4, 1")
    a("s_bfe_u32 s9, s4, 0x30001")
    a("s_lshr_b32 s10, s4, 4")
    a("s_mul_i32 s11, s9, 96")
    a("s_lshl_b32 s12, s7, 4")
    a("s_add_u32 s11, s11, s12")
    a("s_mul_i32 s11, s11, 1792")
    a("s_mul_i32 s12, s10, 896")
    a("s_add_u32 s11, s11, s12")
    a("s_mul_i32 s12, s8, 448")
    a("s_add_u32 s11, s11, s12")
    a("s_lshl_b32 s12, s6, 5")
    a("s_add_u32 s11, s11, s12")
    a("s_lshl_b32 s12, s3, 10")
    a("s_add_u32 s12, s12, %d" % PW_OFF)
    a("v_lshlrev_b32 v2, 4, v1")
    a("v_and_b32 v3, 15, v1")
    a("v_lshrrev_b32 v4, 4, v1")
    a("v_mul_u32_u24 v5, 1792, v3")
    a("v_lshl_add_u32 v5, v4, 3, v5")
    a("s_waitcnt lgkmcnt(0)")
    a("s_add_u32 s16, s16, s12")
    a("s_addc_u32 s17, s17, 0")
    a("s_add_u32 s14, s14, s11")
    a("s_addc_u32 s15, s15, 0")
    for g in range(8):
        a(f"global_load_dwordx4 {vr(8+4*g,4)}, v2, s[16:17]")
        if g < 7:
            a("s_add_u32 s16, s16, %d" % (2688 * 1024))
            a("s_addc_u32 s17, s17, 0")
    for g in range(1, 8):
        a(f"s_waitcnt vmcnt({7-g})")
        for r in range(4):
            a(f"v_add_f32 v{8+r}, v{8+r}, v{8+4*g+r}")
    a("v_cvt_pk_bf16_f32 v6, v8, v9")
    a("v_cvt_pk_bf16_f32 v7, v10, v11")
    a("global_store_dwordx2 v5, v[6:7], s[14:15]")
    a.lab("k3_end")
    a("s_endpgm")


def kd(name, vgpr, sgpr):
    acc = (vgpr + 3) // 4 * 4
    return f""".amdhsa_kernel {name}
  .amdhsa_next_free_vgpr {vgpr}
  .amdhsa_next_free_sgpr {sgpr}
  .amdhsa_accum_offset {acc}
  .amdhsa_group_segment_fixed_size 0
  .amdhsa_kernarg_size 104
  .amdhsa_user_sgpr_count 2
  .amdhsa_user_sgpr_kernarg_segment_ptr 1
  .amdhsa_system_sgpr_workgroup_id_x 1
.end_amdhsa_kernel
"""


def main():
    global TS_ON
    if len(sys.argv) > 2 and sys.argv[2] == "ts":
        TS_ON = True
    out = HEADER
    out += f"; @launch kernel=k1_kernel grid=(256,1,1) block=(512,1,1) lds={K1_LDS}\n"
    out += f"; @launch kernel=k2_kernel grid=(256,1,1) block=(448,1,1) lds={K2_LDS}\n"
    out += f"; @launch kernel=k3_kernel grid=(336,1,1) block=(512,1,1) lds=0\n"
    out += '.amdgcn_target "amdgcn-amd-amdhsa--gfx950"\n.text\n'
    for nm, g in (("k1_kernel", gen_k1), ("k2_kernel", gen_k2), ("k3_kernel", gen_k3)):
        a = A()
        out += f".globl {nm}\n.p2align 8\n.type {nm},@function\n"
        g(a)
        out += a.text()
    sg = 102 if TS_ON else 40
    out += '.section .rodata,"a"\n.p2align 6\n'
    out += kd("k1_kernel", 256, sg)
    out += ".p2align 6\n"
    out += kd("k2_kernel", 132, sg)
    out += ".p2align 6\n"
    out += kd("k3_kernel", 40, 40)
    path = sys.argv[1] if len(sys.argv) > 1 else f"cdna_kernels/{NAME}.s"
    open(path, "w").write(out)


if __name__ == "__main__":
    main()
```

```python
import sys
import os
EXP = os.environ.get('EXP','')
STF = os.environ.get('STF','')
if STF: STF = ' ' + STF

NAME = "concat_heads__gqa_block_cached__gqa_block_cached__near_ridge"

HEADER = """; Kernarg layout for this problem (104 bytes, ptrs only, base s[0:1]):
"""


TS_ON = False


class A:
    def __init__(self):
        self.l = []
        self.nts = 0

    def ts(self):
        if not TS_ON:
            return
        n = self.nts
        self.nts += 1
        assert n < 30
        self.l.append(f"    s_memtime s[{40+2*n}:{41+2*n}]")
        self.l.append("    s_waitcnt lgkmcnt(0)")

    def ts_dump(self, wgsel):
        if not TS_ON:
            return
        self.l.append(f"    s_cmp_lg_u32 s2, {wgsel}")
        self.l.append("    s_cbranch_scc1 Lnodump%d" % id(self))
        self.l.append("    s_cmp_lg_u32 s24, 0")
        self.l.append("    s_cbranch_scc1 Lnodump%d" % id(self))
        self.l.append("    s_load_dwordx2 s[34:35], s[0:1], 88")
        self.l.append("    s_waitcnt lgkmcnt(0)")
        self.l.append("    v_mov_b32 v2, 0")
        for n in range(self.nts):
            self.l.append(f"    s_sub_u32 s36, s{40+2*n}, s40")
            self.l.append(f"    v_mov_b32 v3, s36")
            self.l.append(f"    global_store_dword v2, v3, s[34:35] offset:{4*n}")
        self.l.append("Lnodump%d:" % id(self))

    def __call__(self, s):
        self.l.append("    " + s)

    def lab(self, s):
        self.l.append(s + ":")

    def c(self, s):
        self.l.append("    ; " + s)

    def text(self):
        return "\n".join(self.l) + "\n"


def vr(b, n):
    return f"v[{b}:{b+n-1}]"


def sr(b, n):
    return f"s[{b}:{b+n-1}]"


XSTR = 928
WSTR = 544
XS = 0
WB = [96 * XSTR, 96 * XSTR + 64 * WSTR]
K1_LDS = 158720
QS = 0
VS = 96 * WSTR
KS = 2 * 96 * WSTR
PW_OFF = 16777216


def gen_k1(a):
    WBS = 16384
    NBW = 4
    a.lab("k1_kernel")
    a("s_cmp_ge_u32 s2, 256")
    a("s_cbranch_scc1 k1_end")
    a("s_and_b32 s3, s2, 7")
    a("s_lshr_b32 s4, s2, 3")
    a("s_lshl_b32 s5, s3, 2")
    a("s_lshr_b32 s6, s4, 3")
    a("s_add_u32 s5, s5, s6")
    a("s_lshr_b32 s6, s5, 4")
    a("s_and_b32 s7, s5, 15")
    a("s_and_b32 s8, s4, 7")
    a("s_mul_i32 s9, s6, 40")
    a("s_add_u32 s10, s0, s9")
    a("s_addc_u32 s11, s1, 0")
    a("s_load_dwordx8 s[12:19], s[10:11], 0")
    a("s_load_dwordx2 s[20:21], s[0:1], 96")
    a("v_and_b32 v1, 63, v0")
    a("v_lshrrev_b32 v2, 6, v0")
    a("s_nop 0")
    a("v_readfirstlane_b32 s24, v2")
    a("v_lshlrev_b32 v10, 4, v1")
    a("v_mul_u32_u24 v3, 896, v2")
    a("v_add_u32 v10, v10, v3")
    a("v_lshrrev_b32 v3, 5, v1")
    a("v_lshl_add_u32 v3, v2, 1, v3")
    a("v_bfe_u32 v4, v3, 2, 2")
    a("v_and_b32 v5, 3, v3")
    a("v_lshl_add_u32 v4, v4, 3, v5")
    a("v_lshlrev_b32 v4, 13, v4")
    a("v_bfe_u32 v5, v1, 1, 4")
    a("v_and_b32 v6, 7, v3")
    a("v_xor_b32 v5, v5, v6")
    a("v_and_b32 v6, 1, v1")
    a("v_lshl_add_u32 v5, v5, 1, v6")
    a("v_lshl_add_u32 v12, v5, 4, v4")
    a("v_add_u32 v13, %d, v12" % (4 * 8192))
    a("v_lshrrev_b32 v3, 5, v0")
    a("v_and_b32 v4, 31, v0")
    a("v_lshlrev_b32 v4, 4, v4")
    a("v_lshlrev_b32 v16, 4, v0")
    a("v_mul_u32_u24 v5, %d, v3" % WSTR)
    a("v_add_u32 v17, v5, v4")
    a("v_add_u32 v17, %d, v17" % VS)
    a("s_mul_i32 s30, s24, %d" % XSTR)
    a("s_lshl_b32 s31, s24, 10")
    a("s_add_u32 s31, s31, %d" % WB[0])
    a("s_add_u32 s34, s31, 8192")
    a("s_waitcnt lgkmcnt(0)")
    a.ts()
    a("s_mul_i32 s9, s8, 86016")
    a("s_add_u32 s12, s12, s9")
    a("s_addc_u32 s13, s13, 0")
    a("s_lshl_b32 s9, s8, 4")
    a("s_lshr_b32 s25, s7, 1")
    a("s_add_u32 s9, s9, s25")
    a("s_mul_i32 s9, s9, 24576")
    a("s_add_u32 s14, s14, s9")
    a("s_addc_u32 s15, s15, 0")
    a("s_add_u32 s16, s16, s9")
    a("s_addc_u32 s17, s17, 0")
    a("s_add_u32 s26, s16, 196608")
    a("s_addc_u32 s27, s17, 0")
    a("s_add_u32 s32, s14, 196608")
    a("s_addc_u32 s33, s15, 0")
    a("s_lshl_b32 s9, s7, 9")
    a("s_add_u32 s22, s18, s9")
    a("s_addc_u32 s23, s19, 0")

    def wq_dma(c):
        boff = (c % NBW) * WBS
        a(f"s_add_u32 m0, s31, {boff}")
        a("s_nop 0")
        a("global_load_lds_dwordx4 v12, s[22:23]")
        a(f"s_add_u32 m0, s34, {boff}")
        a("s_nop 0")
        a("global_load_lds_dwordx4 v13, s[22:23]")
        a("s_add_u32 s22, s22, 262144")
        a("s_addc_u32 s23, s23, 0")

    wq_dma(0)
    wq_dma(1)
    a("s_mov_b64 s[36:37], exec")
    a("s_mov_b32 exec_hi, 0x00ffffff")
    for j in range(12):
        a(f"s_add_u32 m0, s30, {j*8*XSTR}")
        a("s_nop 0")
        a("global_load_lds_dwordx4 v10, s[12:13]")
        if j < 11:
            a("s_add_u32 s12, s12, 7168")
            a("s_addc_u32 s13, s13, 0")
    a("s_mov_b64 exec, s[36:37]")
    wq_dma(2)
    wq_dma(3)
    a("v_and_b32 v3, 15, v1")
    a("v_lshrrev_b32 v4, 4, v1")
    a("s_lshr_b32 s25, s24, 2")
    a("s_and_b32 s28, s24, 3")
    a("s_mul_i32 s29, s25, %d" % (48 * XSTR))
    a("v_mul_u32_u24 v5, %d, v3" % XSTR)
    a("v_lshlrev_b32 v6, 4, v4")
    a("v_add3_u32 v14, v5, v6, s29")
    a("v_lshrrev_b32 v5, 2, v3")
    a("v_lshl_add_u32 v5, v4, 2, v5")
    a("v_and_b32 v6, 3, v1")
    a("v_lshlrev_b32 v6, 3, v6")
    a("v_mul_u32_u24 v7, %d, v5" % WSTR)
    a("v_add_u32 v19, v7, v6")
    a("v_lshlrev_b32 v7, 9, v5")
    a("v_add_u32 v7, v7, v6")
    a("v_add_u32 v7, %d, v7" % WB[0])
    a("v_and_b32 v8, 7, v5")
    a("s_lshl_b32 s29, s28, 2")
    for dt in range(4):
        a(f"s_add_u32 s35, s29, {dt}")
        a("v_xor_b32 v9, s35, v8")
        a(f"v_lshl_add_u32 v{124+dt}, v9, 5, v7")
    for r in range(20, 68):
        a(f"v_mov_b32 v{r}, 0")
    a("s_waitcnt vmcnt(4)")
    a("s_barrier")
    a.ts()

    def frag_reads(fs, step):
        for qt in range(3):
            a(f"ds_read_b128 {vr(100+12*fs+4*qt,4)}, v14 offset:{qt*16*XSTR + step*64}")
        aoff = (step % NBW) * WBS
        for dt in range(4):
            a(f"ds_read_b64_tr_b16 {vr(68+16*fs+4*dt,2)}, v{124+dt} offset:{aoff}")
            a(f"ds_read_b64_tr_b16 {vr(68+16*fs+4*dt+2,2)}, v{124+dt} offset:{aoff + 8192}")

    def mfmas(fs, lo, hi):
        lst = [(dt, qt) for dt in range(4) for qt in range(3)]
        for (dt, qt) in lst[lo:hi]:
            acc = 20 + (dt * 3 + qt) * 4
            a(f"v_mfma_f32_16x16x32_bf16 {vr(acc,4)}, {vr(68+16*fs+4*dt,4)}, {vr(100+12*fs+4*qt,4)}, {vr(acc,4)}")

    frag_reads(0, 0)
    a("s_waitcnt lgkmcnt(0)")
    a("s_barrier")
    a.ts()
    kv = 0
    for st in range(14):
        fs = st & 1
        if st + 1 < 14:
            frag_reads(1 - fs, st + 1)
        if st + NBW < 14:
            wq_dma(st + NBW)
        if st == 9:
            for (base, p0, p1) in ((128, "s[16:17]", "s[26:27]"), (152, "s[14:15]", "s[32:33]")):
                for j in range(6):
                    sb = p0 if j < 3 else p1
                    if j % 3 == 0:
                        a("v_mov_b32 v2, v16")
                    else:
                        a("v_add_u32 v2, 8192, v2")
                    a(f"global_load_dwordx4 {vr(base+4*j,4)}, v2, {sb}")
            kv = 12
        if st == 13:
            a("v_add_u32 v18, %d, v17" % (KS - VS))
            mfmas(fs, 0, 6)
            a("s_waitcnt vmcnt(0)")
            for j in range(6):
                off = (j // 3) * 48 * WSTR + (j % 3) * 16 * WSTR
                a(f"ds_write_b128 v17, {vr(128+4*j,4)} offset:{off}")
                a(f"ds_write_b128 v18, {vr(152+4*j,4)} offset:{off}")
            mfmas(fs, 6, 12)
        else:
            mfmas(fs, 0, 12)
        if st < 13:
            last = min(13, st + NBW)
            if st + 2 <= 13:
                a(f"s_waitcnt vmcnt({2*max(0,last-(st+2)) + kv}) lgkmcnt(0)")
            else:
                a("s_waitcnt lgkmcnt(0)")
            a("s_barrier")
        if st in (4, 9, 12):
            a.ts()
    a("s_mul_i32 s29, s25, %d" % (48 * WSTR))
    a("s_lshl_b32 s30, s28, 7")
    a("s_add_u32 s29, s29, s30")
    a("v_mul_u32_u24 v5, %d, v3" % WSTR)
    a("v_lshlrev_b32 v6, 3, v4")
    a("v_add3_u32 v2, v5, v6, s29")
    a("s_nop 4")
    for dt in range(4):
        for qt in range(3):
            acc = 20 + (dt * 3 + qt) * 4
            d = 6 + 2 * ((dt * 3 + qt) % 2)
            a(f"v_cvt_pk_bf16_f32 v{d}, v{acc}, v{acc+1}")
            a(f"v_cvt_pk_bf16_f32 v{d+1}, v{acc+2}, v{acc+3}")
            a(f"ds_write_b64 v2, v[{d}:{d+1}] offset:{qt*16*WSTR + dt*32}")
    a("s_cmp_lt_u32 s24, 6")
    a("s_cselect_b32 s31, 1, 0")
    a("s_cmp_ge_u32 s24, 3")
    a("s_cselect_b32 s25, 1, 0")
    a("s_mul_i32 s30, s25, 3")
    a("s_sub_u32 s28, s24, s30")
    a("s_waitcnt lgkmcnt(0)")
    a("s_barrier")
    a.ts()
    a("s_cmp_eq_u32 s31, 0")
    a("s_cbranch_scc1 k1_end")
    a("s_mul_i32 s29, s25, %d" % (48 * WSTR))
    a("v_mul_u32_u24 v5, %d, v3" % WSTR)
    a("v_lshlrev_b32 v6, 4, v4")
    a("v_add3_u32 v2, v5, v6, s29")
    a("v_add_u32 v8, %d, v2" % KS)
    a("s_mul_i32 s30, s28, %d" % (16 * WSTR))
    a("v_add_u32 v2, s30, v2")
    for s in range(8):
        a(f"ds_read_b128 {vr(204+4*s,4)}, v2 offset:{s*64}")
    for r in range(236, 248):
        a(f"v_mov_b32 v{r}, 0")
    a("s_waitcnt lgkmcnt(0)")
    for kt in range(3):
        for s in range(8):
            a(f"ds_read_b128 {vr(68+(kt*8+s)*4,4)}, v8 offset:{kt*16*WSTR + s*64}")
            if (kt * 8 + s) % 8 == 7:
                pass
        a("s_waitcnt lgkmcnt(0)")
        for s in range(8):
            a(f"v_mfma_f32_16x16x32_bf16 {vr(236+4*kt,4)}, {vr(68+(kt*8+s)*4,4)}, {vr(204+4*s,4)}, {vr(236+4*kt,4)}")
    a("v_add_u32 v19, s29, v19")
    a("v_add_u32 v19, %d, v19" % VS)
    a("s_nop 7")
    a("s_nop 1")
    a.ts()
    S = list(range(236, 248))
    for j in range(0, 12, 2):
        a(f"v_cvt_pk_bf16_f32 v6, v{S[j]}, v{S[j+1]}")
        a(f"v_lshlrev_b32 v{S[j]}, 16, v6")
        a(f"v_and_b32 v{S[j+1]}, 0xffff0000, v6")
    a(f"v_max3_f32 v6, v{S[0]}, v{S[1]}, v{S[2]}")
    for j in range(3, 11, 2):
        a(f"v_max3_f32 v6, v6, v{S[j]}, v{S[j+1]}")
    a(f"v_max_f32 v6, v6, v{S[11]}")
    a("v_mov_b32 v7, v6")
    a("s_nop 1")
    a("v_permlane32_swap_b32 v6, v7")
    a("v_max_f32 v6, v6, v7")
    a("v_mov_b32 v7, v6")
    a("s_nop 1")
    a("v_permlane16_swap_b32 v6, v7")
    a("v_max_f32 v6, v6, v7")
    import struct
    cbits = struct.unpack("<I", struct.pack("<f", 0.0625 * 1.4426950408889634))[0]
    a(f"s_mov_b32 s29, 0x{cbits:08x}")
    a("v_mul_f32 v6, s29, v6")
    for j in range(12):
        a(f"v_fma_f32 v{S[j]}, v{S[j]}, s29, -v6")
    for j in range(12):
        a(f"v_exp_f32 v{S[j]}, v{S[j]}")
    a("s_nop 0")
    a(f"v_add_f32 v6, v{S[0]}, v{S[1]}")
    for j in range(2, 12):
        a(f"v_add_f32 v6, v6, v{S[j]}")
    a("v_mov_b32 v7, v6")
    a("s_nop 1")
    a("v_permlane32_swap_b32 v6, v7")
    a("v_add_f32 v6, v6, v7")
    a("v_mov_b32 v7, v6")
    a("s_nop 1")
    a("v_permlane16_swap_b32 v6, v7")
    a("v_add_f32 v6, v6, v7")
    a("v_rcp_f32 v6, v6")
    a("s_nop 0")
    for j in range(12):
        a(f"v_mul_f32 v{S[j]}, v{S[j]}, v6")
    for j in range(6):
        a(f"v_cvt_pk_bf16_f32 v{248+j}, v{S[2*j]}, v{S[2*j+1]}")
    a.ts()
    for r in range(68, 132):
        a(f"v_mov_b32 v{r}, 0")

    def vreads(t):
        b = 204 + (t % 4) * 4
        a(f"ds_read_b64_tr_b16 {vr(b,2)}, v19 offset:{t*32}")
        a(f"ds_read_b64_tr_b16 {vr(b+2,2)}, v19 offset:{t*32 + 16*WSTR}")
        a(f"ds_read_b64_tr_b16 {vr(132+2*t,2)}, v19 offset:{t*32 + 32*WSTR}")

    for t in range(3):
        vreads(t)
    for t in range(16):
        if t + 3 < 16:
            vreads(t + 3)
            a("s_waitcnt lgkmcnt(9)")
        else:
            a(f"s_waitcnt lgkmcnt({3*(15-t)})")
        b = 204 + (t % 4) * 4
        a(f"v_mfma_f32_16x16x32_bf16 {vr(68+4*t,4)}, {vr(b,4)}, v[248:251], {vr(68+4*t,4)}")
    a("s_nop 7")
    for t in range(16):
        a(f"v_mfma_f32_16x16x16_bf16 {vr(68+4*t,4)}, {vr(132+2*t,2)}, v[252:253], {vr(68+4*t,4)}")
    a("s_mul_i32 s29, s6, 48")
    a("s_lshl_b32 s30, s8, 1")
    a("s_add_u32 s30, s30, s25")
    a("s_mul_i32 s30, s30, 3")
    a("s_add_u32 s29, s29, s30")
    a("s_add_u32 s29, s29, s28")
    a("s_lshl_b32 s29, s29, 7")
    a("s_lshl_b32 s30, s7, 3")
    a("s_add_u32 s29, s29, s30")
    a("s_lshl_b32 s29, s29, 10")
    a("s_add_u32 s20, s20, s29")
    a("s_addc_u32 s21, s21, 0")
    a("v_lshlrev_b32 v2, 4, v1")
    a("v_add_u32 v9, 4096, v2")
    a("s_nop 7")
    for u in range(8):
        t0, t1 = 68 + 8 * u, 68 + 8 * u + 4
        d = 204 + (u % 4) * 4
        a(f"v_cvt_pk_bf16_f32 v{d}, v{t0}, v{t0+1}")
        a(f"v_cvt_pk_bf16_f32 v{d+1}, v{t0+2}, v{t0+3}")
        a(f"v_cvt_pk_bf16_f32 v{d+2}, v{t1}, v{t1+1}")
        a(f"v_cvt_pk_bf16_f32 v{d+3}, v{t1+2}, v{t1+3}")
        if u < 4:
            a(f"global_store_dwordx4 v2, {vr(d,4)}, s[20:21] offset:{u*1024}{STF}")
        else:
            a(f"global_store_dwordx4 v9, {vr(d,4)}, s[20:21] offset:{(u-4)*1024}{STF}")
    if TS_ON:
        a("s_waitcnt vmcnt(0)")
    a.ts()
    a.ts_dump(0)
    a.lab("k1_end")
    a("s_endpgm")


W2STR = 448
K2BUF = 6144 + 32 * W2STR
K2NB = 6
K2_LDS = K2NB * K2BUF


def gen_k2(a):
    NB = K2NB
    a.lab("k2_kernel")
    a("s_cmp_ge_u32 s2, 256")
    a("s_cbranch_scc1 k2_end")
    a("s_and_b32 s3, s2, 7")
    a("s_lshr_b32 s4, s2, 3")
    a("s_lshr_b32 s6, s3, 2")
    a("s_and_b32 s5, s3, 3")
    a("s_lshl_b32 s5, s5, 1")
    a("s_bfe_u32 s7, s4, 0x10003")
    a("s_add_u32 s7, s7, s5")
    a("s_lshr_b32 s8, s4, 4")
    a("s_and_b32 s9, s4, 7")
    a("s_mul_i32 s10, s6, 40")
    a("s_add_u32 s10, s0, s10")
    a("s_addc_u32 s11, s1, 0")
    a("s_load_dwordx2 s[12:13], s[10:11], 32")
    a("s_load_dwordx2 s[16:17], s[0:1], 96")
    a("v_and_b32 v1, 63, v0")
    a("v_lshrrev_b32 v2, 6, v0")
    a("s_nop 0")
    a("v_readfirstlane_b32 s24, v2")
    a("s_mov_b32 s18, 2341")
    a("v_mul_lo_u32 v3, v0, s18")
    a("v_lshrrev_b32 v3, 16, v3")
    a("v_mul_u32_u24 v4, 28, v3")
    a("v_sub_u32 v4, v0, v4")
    a("v_lshlrev_b32 v4, 4, v4")
    a("v_mul_u32_u24 v5, 896, v3")
    a("v_add_u32 v10, v5, v4")
    a("v_add_u32 v11, %d, v10" % (16 * 896))
    a("s_min_u32 s25, s24, 5")
    a("v_lshlrev_b32 v13, 4, v1")
    a("v_lshlrev_b32 v16, 4, v1")
    a("v_and_b32 v3, 15, v1")
    a("v_lshrrev_b32 v4, 4, v1")
    a("v_lshrrev_b32 v5, 2, v3")
    a("v_lshl_add_u32 v5, v4, 2, v5")
    a("v_mul_u32_u24 v5, %d, v5" % W2STR)
    a("v_and_b32 v6, 3, v1")
    a("v_lshlrev_b32 v6, 3, v6")
    a("s_lshl_b32 s18, s24, 6")
    a("s_add_u32 s18, s18, 6144")
    a("v_add3_u32 v18, v5, v6, s18")
    a("v_add_u32 v2, %d, v16" % (3 * K2BUF))
    a("v_add_u32 v3, %d, v18" % (3 * K2BUF))
    a("s_lshl_b32 s30, s25, 10")
    a("s_lshl_b32 s31, s24, 10")
    a("s_add_u32 s31, s31, 6144")
    a("s_add_u32 s32, s31, 7168")
    a("s_waitcnt lgkmcnt(0)")
    a.ts()
    a("s_mul_i32 s18, s7, %d" % (512 * 896))
    a("s_mul_i32 s19, s8, 448")
    a("s_add_u32 s18, s18, s19")
    a("s_add_u32 s12, s12, s18")
    a("s_addc_u32 s13, s13, 0")
    a("s_mul_i32 s18, s6, 48")
    a("s_mul_i32 s19, s9, 6")
    a("s_add_u32 s18, s18, s19")
    a("s_add_u32 s18, s18, s25")
    a("s_lshl_b32 s18, s18, 7")
    a("s_lshl_b32 s19, s7, 4")
    a("s_add_u32 s18, s18, s19")
    a("s_lshl_b32 s18, s18, 10")
    a("s_add_u32 s14, s16, s18")
    a("s_addc_u32 s15, s17, 0")
    a("s_lshl_b32 s18, s7, 1")
    a("s_add_u32 s18, s18, s6")
    a("s_lshl_b32 s18, s18, 3")
    a("s_add_u32 s18, s18, s9")
    a("s_lshl_b32 s18, s18, 1")
    a("s_add_u32 s18, s18, s8")
    a("s_mul_i32 s18, s18, 84")
    a("s_mul_i32 s19, s24, 12")
    a("s_add_u32 s18, s18, s19")
    a("s_lshl_b32 s18, s18, 10")
    a("s_add_u32 s18, s18, %d" % PW_OFF)
    a("s_add_u32 s20, s16, s18")
    a("s_addc_u32 s21, s17, 0")

    def dma(c):
        if 'noload' in EXP:
            return
        boff = (c % NB) * K2BUF
        a(f"s_add_u32 m0, s31, {boff}")
        a("s_nop 0")
        a("global_load_lds_dwordx4 v10, s[12:13]")
        a(f"s_add_u32 m0, s32, {boff}")
        a("s_nop 0")
        a("global_load_lds_dwordx4 v11, s[12:13]")
        a(f"s_add_u32 m0, s30, {boff}")
        a("s_add_u32 s12, s12, 28672")
        a("s_addc_u32 s13, s13, 0")
        a("global_load_lds_dwordx4 v13, s[14:15]")
        a("v_add_u32 v13, 1024, v13")

    for c in range(NB):
        dma(c)
    for r in range(20, 68):
        a(f"v_mov_b32 v{r}, 0")
    a(f"s_waitcnt vmcnt({3*(NB-2)})")
    a("s_barrier")
    a.ts()

    def frag_reads(fs, step):
        if 'noread' in EXP:
            return
        buf = step % NB
        vb, va = ("v16", "v18") if buf < 3 else ("v2", "v3")
        off = (buf % 3) * K2BUF
        for qt in range(6):
            a(f"ds_read_b128 {vr(68+24*fs+4*qt,4)}, {vb} offset:{off + qt*1024}")
        for e in range(2):
            a(f"ds_read_b64_tr_b16 {vr(116+8*fs+4*e,2)}, {va} offset:{off + e*32}")
            a(f"ds_read_b64_tr_b16 {vr(116+8*fs+4*e+2,2)}, {va} offset:{off + e*32 + 16*W2STR}")

    def mfmas(fs, lo, hi):
        if 'nomfma' in EXP:
            return
        lst = [(e, qt) for e in range(2) for qt in range(6)]
        for (e, qt) in lst[lo:hi]:
            acc = 20 + (e * 6 + qt) * 4
            a(f"v_mfma_f32_16x16x32_bf16 {vr(acc,4)}, {vr(116+8*fs+4*e,4)}, {vr(68+24*fs+4*qt,4)}, {vr(acc,4)}")

    frag_reads(0, 0)
    a("s_waitcnt lgkmcnt(0)")
    a("s_barrier")
    for st in range(16):
        fs = st & 1
        if st + 1 < 16:
            frag_reads(1 - fs, st + 1)
        if st + NB < 16:
            dma(st + NB)
        mfmas(fs, 0, 12)
        if st < 15:
            last = min(15, st + NB)
            if st + 2 <= 15:
                a(f"s_waitcnt vmcnt({3*max(0,last-(st+2))}) lgkmcnt(0)")
            else:
                a("s_waitcnt lgkmcnt(0)")
            if st < 14:
                a("s_barrier")
        if st % 4 == 3:
            a.ts()
    a("v_lshlrev_b32 v2, 4, v1")
    a("v_add_u32 v3, 4096, v2")
    a("v_add_u32 v4, 8192, v2")
    a("s_nop 7")
    for t in range(12):
        a(f"global_store_dwordx4 v{2+t//4}, {vr(20+4*t,4)}, s[20:21] offset:{(t%4)*1024}{STF}")
    if TS_ON:
        a("s_waitcnt vmcnt(0)")
    a.ts()
    a.ts_dump(0)
    a.lab("k2_end")
    a("s_endpgm")


def gen_k3(a):
    a.lab("k3_kernel")
    a("s_cmp_ge_u32 s2, 336")
    a("s_cbranch_scc1 k3_end")
    a("s_load_dwordx2 s[14:15], s[0:1], 80")
    a("s_load_dwordx2 s[16:17], s[0:1], 96")
    a("v_and_b32 v1, 63, v0")
    a("v_lshrrev_b32 v2, 6, v0")
    a("s_nop 0")
    a("v_readfirstlane_b32 s24, v2")
    a("s_lshl_b32 s3, s2, 3")
    a("s_add_u32 s3, s3, s24")
    a("s_mul_i32 s4, s3, 3121")
    a("s_lshr_b32 s4, s4, 18")
    a("s_mul_i32 s5, s4, 84")
    a("s_sub_u32 s5, s3, s5")
    a("s_mul_i32 s6, s5, 43")
    a("s_lshr_b32 s6, s6, 8")
    a("s_mul_i32 s7, s6, 6")
    a("s_sub_u32 s7, s5, s7")
    a("s_and_b32 s8, s4, 1")
    a("s_bfe_u32 s9, s4, 0x30001")
    a("s_lshr_b32 s10, s4, 4")
    a("s_mul_i32 s11, s9, 96")
    a("s_lshl_b32 s12, s7, 4")
    a("s_add_u32 s11, s11, s12")
    a("s_mul_i32 s11, s11, 1792")
    a("s_mul_i32 s12, s10, 896")
    a("s_add_u32 s11, s11, s12")
    a("s_mul_i32 s12, s8, 448")
    a("s_add_u32 s11, s11, s12")
    a("s_lshl_b32 s12, s6, 5")
    a("s_add_u32 s11, s11, s12")
    a("s_lshl_b32 s12, s3, 10")
    a("s_add_u32 s12, s12, %d" % PW_OFF)
    a("v_lshlrev_b32 v2, 4, v1")
    a("v_and_b32 v3, 15, v1")
    a("v_lshrrev_b32 v4, 4, v1")
    a("v_mul_u32_u24 v5, 1792, v3")
    a("v_lshl_add_u32 v5, v4, 3, v5")
    a("s_waitcnt lgkmcnt(0)")
    a("s_add_u32 s16, s16, s12")
    a("s_addc_u32 s17, s17, 0")
    a("s_add_u32 s14, s14, s11")
    a("s_addc_u32 s15, s15, 0")
    for g in range(8):
        a(f"global_load_dwordx4 {vr(8+4*g,4)}, v2, s[16:17]")
        if g < 7:
            a("s_add_u32 s16, s16, %d" % (2688 * 1024))
            a("s_addc_u32 s17, s17, 0")
    for g in range(1, 8):
        a(f"s_waitcnt vmcnt({7-g})")
        for r in range(4):
            a(f"v_add_f32 v{8+r}, v{8+r}, v{8+4*g+r}")
    a("v_cvt_pk_bf16_f32 v6, v8, v9")
    a("v_cvt_pk_bf16_f32 v7, v10, v11")
    a("global_store_dwordx2 v5, v[6:7], s[14:15]")
    a.lab("k3_end")
    a("s_endpgm")


def kd(name, vgpr, sgpr):
    acc = (vgpr + 3) // 4 * 4
    return f""".amdhsa_kernel {name}
  .amdhsa_next_free_vgpr {vgpr}
  .amdhsa_next_free_sgpr {sgpr}
  .amdhsa_accum_offset {acc}
  .amdhsa_group_segment_fixed_size 0
  .amdhsa_kernarg_size 104
  .amdhsa_user_sgpr_count 2
  .amdhsa_user_sgpr_kernarg_segment_ptr 1
  .amdhsa_system_sgpr_workgroup_id_x 1
.end_amdhsa_kernel
"""


def main():
    global TS_ON
    if len(sys.argv) > 2 and sys.argv[2] == "ts":
        TS_ON = True
    out = HEADER
    out += f"; @launch kernel=k1_kernel grid=(256,1,1) block=(512,1,1) lds={K1_LDS}\n"
    out += f"; @launch kernel=k2_kernel grid=(256,1,1) block=(448,1,1) lds={K2_LDS}\n"
    out += f"; @launch kernel=k3_kernel grid=(336,1,1) block=(512,1,1) lds=0\n"
    out += '.amdgcn_target "amdgcn-amd-amdhsa--gfx950"\n.text\n'
    for nm, g in (("k1_kernel", gen_k1), ("k2_kernel", gen_k2), ("k3_kernel", gen_k3)):
        a = A()
        out += f".globl {nm}\n.p2align 8\n.type {nm},@function\n"
        g(a)
        out += a.text()
    sg = 102 if TS_ON else 40
    out += '.section .rodata,"a"\n.p2align 6\n'
    out += kd("k1_kernel", 256, sg)
    out += ".p2align 6\n"
    out += kd("k2_kernel", 132, sg)
    out += ".p2align 6\n"
    out += kd("k3_kernel", 40, 40)
    path = sys.argv[1] if len(sys.argv) > 1 else f"cdna_kernels/{NAME}.s"
    open(path, "w").write(out)


if __name__ == "__main__":
    main()
```

```python
import sys
import os
EXP = os.environ.get('EXP','')
STF = os.environ.get('STF','')
if STF: STF = ' ' + STF

NAME = "concat_heads__gqa_block_cached__gqa_block_cached__near_ridge"

HEADER = """; Kernarg layout for this problem (104 bytes, ptrs only, base s[0:1]):
"""


TS_ON = False


class A:
    def __init__(self):
        self.l = []
        self.nts = 0

    def ts(self):
        if not TS_ON:
            return
        n = self.nts
        self.nts += 1
        assert n < 30
        self.l.append(f"    s_memtime s[{40+2*n}:{41+2*n}]")
        self.l.append("    s_waitcnt lgkmcnt(0)")

    def ts_dump(self, wgsel):
        if not TS_ON:
            return
        self.l.append(f"    s_cmp_lg_u32 s2, {wgsel}")
        self.l.append("    s_cbranch_scc1 Lnodump%d" % id(self))
        self.l.append("    s_cmp_lg_u32 s24, 0")
        self.l.append("    s_cbranch_scc1 Lnodump%d" % id(self))
        self.l.append("    s_load_dwordx2 s[34:35], s[0:1], 88")
        self.l.append("    s_waitcnt lgkmcnt(0)")
        self.l.append("    v_mov_b32 v2, 0")
        for n in range(self.nts):
            self.l.append(f"    s_sub_u32 s36, s{40+2*n}, s40")
            self.l.append(f"    v_mov_b32 v3, s36")
            self.l.append(f"    global_store_dword v2, v3, s[34:35] offset:{4*n}")
        self.l.append("Lnodump%d:" % id(self))

    def __call__(self, s):
        self.l.append("    " + s)

    def lab(self, s):
        self.l.append(s + ":")

    def c(self, s):
        self.l.append("    ; " + s)

    def text(self):
        return "\n".join(self.l) + "\n"


def vr(b, n):
    return f"v[{b}:{b+n-1}]"


def sr(b, n):
    return f"s[{b}:{b+n-1}]"


XSTR = 928
WSTR = 544
XS = 0
WB = [96 * XSTR, 96 * XSTR + 64 * WSTR]
K1_LDS = 158720
QS = 0
VS = 96 * WSTR
KS = 2 * 96 * WSTR
PW_OFF = 16777216


def gen_k1(a):
    WBS = 16384
    NBW = 4
    a.lab("k1_kernel")
    a("s_cmp_ge_u32 s2, 256")
    a("s_cbranch_scc1 k1_end")
    a("s_and_b32 s3, s2, 7")
    a("s_lshr_b32 s4, s2, 3")
    a("s_lshl_b32 s5, s3, 2")
    a("s_lshr_b32 s6, s4, 3")
    a("s_add_u32 s5, s5, s6")
    a("s_lshr_b32 s6, s5, 4")
    a("s_and_b32 s7, s5, 15")
    a("s_and_b32 s8, s4, 7")
    a("s_mul_i32 s9, s6, 40")
    a("s_add_u32 s10, s0, s9")
    a("s_addc_u32 s11, s1, 0")
    a("s_load_dwordx8 s[12:19], s[10:11], 0")
    a("s_load_dwordx2 s[20:21], s[0:1], 96")
    a("v_and_b32 v1, 63, v0")
    a("v_lshrrev_b32 v2, 6, v0")
    a("s_nop 0")
    a("v_readfirstlane_b32 s24, v2")
    a("v_lshlrev_b32 v10, 4, v1")
    a("v_mul_u32_u24 v3, 896, v2")
    a("v_add_u32 v10, v10, v3")
    a("v_lshrrev_b32 v3, 5, v1")
    a("v_lshl_add_u32 v3, v2, 1, v3")
    a("v_bfe_u32 v4, v3, 2, 2")
    a("v_and_b32 v5, 3, v3")
    a("v_lshl_add_u32 v4, v4, 3, v5")
    a("v_lshlrev_b32 v4, 13, v4")
    a("v_bfe_u32 v5, v1, 1, 4")
    a("v_and_b32 v6, 7, v3")
    a("v_xor_b32 v5, v5, v6")
    a("v_and_b32 v6, 1, v1")
    a("v_lshl_add_u32 v5, v5, 1, v6")
    a("v_lshl_add_u32 v12, v5, 4, v4")
    a("v_add_u32 v13, %d, v12" % (4 * 8192))
    a("v_lshrrev_b32 v3, 5, v0")
    a("v_and_b32 v4, 31, v0")
    a("v_lshlrev_b32 v4, 4, v4")
    a("v_lshlrev_b32 v16, 4, v0")
    a("v_mul_u32_u24 v5, %d, v3" % WSTR)
    a("v_add_u32 v17, v5, v4")
    a("v_add_u32 v17, %d, v17" % VS)
    a("s_mul_i32 s30, s24, %d" % XSTR)
    a("s_lshl_b32 s31, s24, 10")
    a("s_add_u32 s31, s31, %d" % WB[0])
    a("s_add_u32 s34, s31, 8192")
    a("s_waitcnt lgkmcnt(0)")
    a.ts()
    a("s_mul_i32 s9, s8, 86016")
    a("s_add_u32 s12, s12, s9")
    a("s_addc_u32 s13, s13, 0")
    a("s_lshl_b32 s9, s8, 4")
    a("s_lshr_b32 s25, s7, 1")
    a("s_add_u32 s9, s9, s25")
    a("s_mul_i32 s9, s9, 24576")
    a("s_add_u32 s14, s14, s9")
    a("s_addc_u32 s15, s15, 0")
    a("s_add_u32 s16, s16, s9")
    a("s_addc_u32 s17, s17, 0")
    a("s_add_u32 s26, s16, 196608")
    a("s_addc_u32 s27, s17, 0")
    a("s_add_u32 s32, s14, 196608")
    a("s_addc_u32 s33, s15, 0")
    a("s_lshl_b32 s9, s7, 9")
    a("s_add_u32 s22, s18, s9")
    a("s_addc_u32 s23, s19, 0")

    ops = []

    def vm_wait(tag):
        idx = max(i for i, t in enumerate(ops) if t == tag)
        return len(ops) - 1 - idx

    def wq_dma(c):
        ops.extend([("wq", c), ("wq", c)])
        boff = (c % NBW) * WBS
        a(f"s_add_u32 m0, s31, {boff}")
        a("s_nop 0")
        a("global_load_lds_dwordx4 v12, s[22:23]")
        a(f"s_add_u32 m0, s34, {boff}")
        a("s_nop 0")
        a("global_load_lds_dwordx4 v13, s[22:23]")
        a("s_add_u32 s22, s22, 262144")
        a("s_addc_u32 s23, s23, 0")

    wq_dma(0)
    wq_dma(1)
    a("s_mov_b64 s[36:37], exec")
    a("s_mov_b32 exec_hi, 0x00ffffff")
    for j in range(12):
        a(f"s_add_u32 m0, s30, {j*8*XSTR}")
        a("s_nop 0")
        a("global_load_lds_dwordx4 v10, s[12:13]")
        ops.append(("x", 0))
        if j < 11:
            a("s_add_u32 s12, s12, 7168")
            a("s_addc_u32 s13, s13, 0")
    a("s_mov_b64 exec, s[36:37]")
    wq_dma(2)
    wq_dma(3)
    a("v_and_b32 v3, 15, v1")
    a("v_lshrrev_b32 v4, 4, v1")
    a("s_lshr_b32 s25, s24, 2")
    a("s_and_b32 s28, s24, 3")
    a("s_mul_i32 s29, s25, %d" % (48 * XSTR))
    a("v_mul_u32_u24 v5, %d, v3" % XSTR)
    a("v_lshlrev_b32 v6, 4, v4")
    a("v_add3_u32 v14, v5, v6, s29")
    a("v_lshrrev_b32 v5, 2, v3")
    a("v_lshl_add_u32 v5, v4, 2, v5")
    a("v_and_b32 v6, 3, v1")
    a("v_lshlrev_b32 v6, 3, v6")
    a("v_mul_u32_u24 v7, %d, v5" % WSTR)
    a("v_add_u32 v19, v7, v6")
    a("v_lshlrev_b32 v7, 9, v5")
    a("v_add_u32 v7, v7, v6")
    a("v_add_u32 v7, %d, v7" % WB[0])
    a("v_and_b32 v8, 7, v5")
    a("s_lshl_b32 s29, s28, 2")
    for dt in range(4):
        a(f"s_add_u32 s35, s29, {dt}")
        a("v_xor_b32 v9, s35, v8")
        a(f"v_lshl_add_u32 v{124+dt}, v9, 5, v7")
    for r in range(20, 68):
        a(f"v_mov_b32 v{r}, 0")
    a("s_waitcnt vmcnt(4)")
    a("s_barrier")
    a.ts()

    def frag_reads(fs, step):
        for qt in range(3):
            a(f"ds_read_b128 {vr(100+12*fs+4*qt,4)}, v14 offset:{qt*16*XSTR + step*64}")
        aoff = (step % NBW) * WBS
        for dt in range(4):
            a(f"ds_read_b64_tr_b16 {vr(68+16*fs+4*dt,2)}, v{124+dt} offset:{aoff}")
            a(f"ds_read_b64_tr_b16 {vr(68+16*fs+4*dt+2,2)}, v{124+dt} offset:{aoff + 8192}")

    def mfmas(fs, lo, hi):
        lst = [(dt, qt) for dt in range(4) for qt in range(3)]
        for (dt, qt) in lst[lo:hi]:
            acc = 20 + (dt * 3 + qt) * 4
            a(f"v_mfma_f32_16x16x32_bf16 {vr(acc,4)}, {vr(68+16*fs+4*dt,4)}, {vr(100+12*fs+4*qt,4)}, {vr(acc,4)}")

    frag_reads(0, 0)
    a("s_waitcnt lgkmcnt(0)")
    a("s_barrier")
    a.ts()
    kv = 0
    for st in range(14):
        fs = st & 1
        inter = (st + 1 < 14) and st != 13 and 'nointer' not in EXP
        if st + 1 < 14 and not inter:
            frag_reads(1 - fs, st + 1)
        if st + NBW < 14:
            wq_dma(st + NBW)
        if 4 <= st <= 9:
            for jj in range(2):
                q = (st - 4) * 2 + jj
                base, p0, p1 = ((128, "s[16:17]", "s[26:27]"), (152, "s[14:15]", "s[32:33]"))[q // 6]
                j = q % 6
                sb = p0 if j < 3 else p1
                a(f"v_add_u32 v2, {8192*(j%3)}, v16")
                a(f"global_load_dwordx4 {vr(base+4*j,4)}, v2, {sb}")
                ops.append(("kv", q))
        if st == 13:
            a("v_add_u32 v18, %d, v17" % (KS - VS))
            mfmas(fs, 0, 6)
            a("s_waitcnt vmcnt(0)")
            for j in range(6):
                off = (j // 3) * 48 * WSTR + (j % 3) * 16 * WSTR
                a(f"ds_write_b128 v17, {vr(128+4*j,4)} offset:{off}")
                a(f"ds_write_b128 v18, {vr(152+4*j,4)} offset:{off}")
            mfmas(fs, 6, 12)
        elif inter:
            sub = A()
            sub.nts = 99
            save = a.l
            a.l = []
            frag_reads(1 - fs, st + 1)
            rl = a.l
            a.l = []
            mfmas(fs, 0, 12)
            ml = a.l
            a.l = save
            for i in range(max(len(rl), len(ml))):
                if i < len(ml):
                    a.l.append(ml[i])
                if i < len(rl):
                    a.l.append(rl[i])
        else:
            mfmas(fs, 0, 12)
        if st < 13:
            last = min(13, st + NBW)
            if st + 2 <= 13:
                a(f"s_waitcnt vmcnt({vm_wait(('wq', st+2))}) lgkmcnt(0)")
            else:
                a("s_waitcnt lgkmcnt(0)")
            a("s_barrier")
        if st in (4, 9, 12):
            a.ts()
    a("s_mul_i32 s29, s25, %d" % (48 * WSTR))
    a("s_lshl_b32 s30, s28, 7")
    a("s_add_u32 s29, s29, s30")
    a("v_mul_u32_u24 v5, %d, v3" % WSTR)
    a("v_lshlrev_b32 v6, 3, v4")
    a("v_add3_u32 v2, v5, v6, s29")
    a("s_nop 4")
    for dt in range(4):
        for qt in range(3):
            acc = 20 + (dt * 3 + qt) * 4
            d = 6 + 2 * ((dt * 3 + qt) % 2)
            a(f"v_cvt_pk_bf16_f32 v{d}, v{acc}, v{acc+1}")
            a(f"v_cvt_pk_bf16_f32 v{d+1}, v{acc+2}, v{acc+3}")
            a(f"ds_write_b64 v2, v[{d}:{d+1}] offset:{qt*16*WSTR + dt*32}")
    a("s_cmp_lt_u32 s24, 6")
    a("s_cselect_b32 s31, 1, 0")
    a("s_cmp_ge_u32 s24, 3")
    a("s_cselect_b32 s25, 1, 0")
    a("s_mul_i32 s30, s25, 3")
    a("s_sub_u32 s28, s24, s30")
    a("s_waitcnt lgkmcnt(0)")
    a("s_barrier")
    a.ts()
    a("s_cmp_eq_u32 s31, 0")
    a("s_cbranch_scc1 k1_pf")
    a("s_mul_i32 s29, s25, %d" % (48 * WSTR))
    a("v_mul_u32_u24 v5, %d, v3" % WSTR)
    a("v_lshlrev_b32 v6, 4, v4")
    a("v_add3_u32 v2, v5, v6, s29")
    a("v_add_u32 v8, %d, v2" % KS)
    a("s_mul_i32 s30, s28, %d" % (16 * WSTR))
    a("v_add_u32 v2, s30, v2")
    for s in range(8):
        a(f"ds_read_b128 {vr(204+4*s,4)}, v2 offset:{s*64}")
    for r in range(236, 248):
        a(f"v_mov_b32 v{r}, 0")
    a("s_waitcnt lgkmcnt(0)")
    for kt in range(3):
        for s in range(8):
            a(f"ds_read_b128 {vr(68+(kt*8+s)*4,4)}, v8 offset:{kt*16*WSTR + s*64}")
            if (kt * 8 + s) % 8 == 7:
                pass
        a("s_waitcnt lgkmcnt(0)")
        for s in range(8):
            a(f"v_mfma_f32_16x16x32_bf16 {vr(236+4*kt,4)}, {vr(68+(kt*8+s)*4,4)}, {vr(204+4*s,4)}, {vr(236+4*kt,4)}")
    a("v_add_u32 v19, s29, v19")
    a("v_add_u32 v19, %d, v19" % VS)
    a("s_nop 7")
    a("s_nop 1")
    a.ts()
    S = list(range(236, 248))
    for j in range(0, 12, 2):
        a(f"v_cvt_pk_bf16_f32 v6, v{S[j]}, v{S[j+1]}")
        a(f"v_lshlrev_b32 v{S[j]}, 16, v6")
        a(f"v_and_b32 v{S[j+1]}, 0xffff0000, v6")
    a(f"v_max3_f32 v6, v{S[0]}, v{S[1]}, v{S[2]}")
    for j in range(3, 11, 2):
        a(f"v_max3_f32 v6, v6, v{S[j]}, v{S[j+1]}")
    a(f"v_max_f32 v6, v6, v{S[11]}")
    a("v_mov_b32 v7, v6")
    a("s_nop 1")
    a("v_permlane32_swap_b32 v6, v7")
    a("v_max_f32 v6, v6, v7")
    a("v_mov_b32 v7, v6")
    a("s_nop 1")
    a("v_permlane16_swap_b32 v6, v7")
    a("v_max_f32 v6, v6, v7")
    import struct
    cbits = struct.unpack("<I", struct.pack("<f", 0.0625 * 1.4426950408889634))[0]
    a(f"s_mov_b32 s29, 0x{cbits:08x}")
    a("v_mul_f32 v6, s29, v6")
    for j in range(12):
        a(f"v_fma_f32 v{S[j]}, v{S[j]}, s29, -v6")
    for j in range(12):
        a(f"v_exp_f32 v{S[j]}, v{S[j]}")
    a("s_nop 0")
    a(f"v_add_f32 v6, v{S[0]}, v{S[1]}")
    for j in range(2, 12):
        a(f"v_add_f32 v6, v6, v{S[j]}")
    a("v_mov_b32 v7, v6")
    a("s_nop 1")
    a("v_permlane32_swap_b32 v6, v7")
    a("v_add_f32 v6, v6, v7")
    a("v_mov_b32 v7, v6")
    a("s_nop 1")
    a("v_permlane16_swap_b32 v6, v7")
    a("v_add_f32 v6, v6, v7")
    a("v_rcp_f32 v6, v6")
    a("s_nop 0")
    for j in range(12):
        a(f"v_mul_f32 v{S[j]}, v{S[j]}, v6")
    for j in range(6):
        a(f"v_cvt_pk_bf16_f32 v{248+j}, v{S[2*j]}, v{S[2*j+1]}")
    a.ts()
    for r in range(68, 132):
        a(f"v_mov_b32 v{r}, 0")

    def vreads(t):
        b = 204 + (t % 4) * 4
        a(f"ds_read_b64_tr_b16 {vr(b,2)}, v19 offset:{t*32}")
        a(f"ds_read_b64_tr_b16 {vr(b+2,2)}, v19 offset:{t*32 + 16*WSTR}")
        a(f"ds_read_b64_tr_b16 {vr(132+2*t,2)}, v19 offset:{t*32 + 32*WSTR}")

    for t in range(3):
        vreads(t)
    for t in range(16):
        if t + 3 < 16:
            vreads(t + 3)
            a("s_waitcnt lgkmcnt(9)")
        else:
            a(f"s_waitcnt lgkmcnt({3*(15-t)})")
        b = 204 + (t % 4) * 4
        a(f"v_mfma_f32_16x16x32_bf16 {vr(68+4*t,4)}, {vr(b,4)}, v[248:251], {vr(68+4*t,4)}")
    a("s_nop 7")
    for t in range(16):
        a(f"v_mfma_f32_16x16x16_bf16 {vr(68+4*t,4)}, {vr(132+2*t,2)}, v[252:253], {vr(68+4*t,4)}")
    a("s_mul_i32 s29, s6, 48")
    a("s_lshl_b32 s30, s8, 1")
    a("s_add_u32 s30, s30, s25")
    a("s_mul_i32 s30, s30, 3")
    a("s_add_u32 s29, s29, s30")
    a("s_add_u32 s29, s29, s28")
    a("s_lshl_b32 s29, s29, 7")
    a("s_lshl_b32 s30, s7, 3")
    a("s_add_u32 s29, s29, s30")
    a("s_lshl_b32 s29, s29, 10")
    a("s_add_u32 s20, s20, s29")
    a("s_addc_u32 s21, s21, 0")
    a("v_lshlrev_b32 v2, 4, v1")
    a("v_add_u32 v9, 4096, v2")
    a("s_nop 7")
    for u in range(8):
        t0, t1 = 68 + 8 * u, 68 + 8 * u + 4
        d = 204 + (u % 4) * 4
        a(f"v_cvt_pk_bf16_f32 v{d}, v{t0}, v{t0+1}")
        a(f"v_cvt_pk_bf16_f32 v{d+1}, v{t0+2}, v{t0+3}")
        a(f"v_cvt_pk_bf16_f32 v{d+2}, v{t1}, v{t1+1}")
        a(f"v_cvt_pk_bf16_f32 v{d+3}, v{t1+2}, v{t1+3}")
        if u < 4:
            a(f"global_store_dwordx4 v2, {vr(d,4)}, s[20:21] offset:{u*1024}{STF}")
        else:
            a(f"global_store_dwordx4 v9, {vr(d,4)}, s[20:21] offset:{(u-4)*1024}{STF}")
    if TS_ON:
        a("s_waitcnt vmcnt(0)")
    a.ts()
    a.ts_dump(0)
    a.lab("k1_end")
    a("s_endpgm")
    a.lab("k1_pf")
    if 'nopf' in EXP:
        a("s_endpgm")
    a("s_load_dwordx2 s[12:13], s[10:11], 32")
    a("s_lshr_b32 s14, s7, 1")
    a("s_mul_i32 s14, s14, %d" % (512 * 896))
    a("s_and_b32 s15, s7, 1")
    a("s_mul_i32 s15, s15, 448")
    a("s_add_u32 s14, s14, s15")
    a("s_sub_u32 s15, s24, 6")
    a("s_mul_i32 s15, s15, 1792")
    a("s_add_u32 s14, s14, s15")
    a("v_cmp_gt_u32 vcc, 28, v1")
    a("v_subrev_u32 v3, 28, v1")
    a("s_nop 0")
    a("v_cndmask_b32 v2, v3, v1, vcc")
    a("v_lshlrev_b32 v2, 4, v2")
    a("v_cndmask_b32 v3, 896, 0, vcc") if False else None
    a("v_mov_b32 v4, 896")
    a("v_cndmask_b32 v3, v4, 0, vcc") if False else None
    a("v_mov_b32 v5, 0")
    a("v_cndmask_b32 v3, v4, v5, vcc")
    a("v_add_u32 v2, v2, v3")
    a("s_waitcnt lgkmcnt(0)")
    a("s_add_u32 s12, s12, s14")
    a("s_addc_u32 s13, s13, 0")
    a("s_mov_b32 exec_hi, 0x00ffffff")
    a("s_mov_b32 s14, 0")
    a.lab("k1_pf_loop")
    for j in range(8):
        a(f"global_load_dwordx4 {vr(20+4*j,4)}, v2, s[12:13]")
        a("s_add_u32 s12, s12, 3584")
        a("s_addc_u32 s13, s13, 0")
    a("s_add_u32 s14, s14, 1")
    a("s_cmp_lt_u32 s14, 16")
    a("s_cbranch_scc1 k1_pf_loop")
    a("s_endpgm")


W2STR = 448
K2BUF = 6144 + 32 * W2STR
K2NB = 6
K2_LDS = K2NB * K2BUF


def gen_k2(a):
    NB = K2NB
    a.lab("k2_kernel")
    a("s_cmp_ge_u32 s2, 256")
    a("s_cbranch_scc1 k2_end")
    a("s_and_b32 s3, s2, 7")
    a("s_lshr_b32 s4, s2, 3")
    a("s_lshr_b32 s6, s3, 2")
    a("s_and_b32 s5, s3, 3")
    a("s_lshl_b32 s5, s5, 1")
    a("s_bfe_u32 s7, s4, 0x10003")
    a("s_add_u32 s7, s7, s5")
    a("s_lshr_b32 s8, s4, 4")
    a("s_and_b32 s9, s4, 7")
    a("s_mul_i32 s10, s6, 40")
    a("s_add_u32 s10, s0, s10")
    a("s_addc_u32 s11, s1, 0")
    a("s_load_dwordx2 s[12:13], s[10:11], 32")
    a("s_load_dwordx2 s[16:17], s[0:1], 96")
    a("v_and_b32 v1, 63, v0")
    a("v_lshrrev_b32 v2, 6, v0")
    a("s_nop 0")
    a("v_readfirstlane_b32 s24, v2")
    a("s_mov_b32 s18, 2341")
    a("v_mul_lo_u32 v3, v0, s18")
    a("v_lshrrev_b32 v3, 16, v3")
    a("v_mul_u32_u24 v4, 28, v3")
    a("v_sub_u32 v4, v0, v4")
    a("v_lshlrev_b32 v4, 4, v4")
    a("v_mul_u32_u24 v5, 896, v3")
    a("v_add_u32 v10, v5, v4")
    a("v_add_u32 v11, %d, v10" % (16 * 896))
    a("s_min_u32 s25, s24, 5")
    a("v_lshlrev_b32 v13, 4, v1")
    a("v_lshlrev_b32 v16, 4, v1")
    a("v_and_b32 v3, 15, v1")
    a("v_lshrrev_b32 v4, 4, v1")
    a("v_lshrrev_b32 v5, 2, v3")
    a("v_lshl_add_u32 v5, v4, 2, v5")
    a("v_mul_u32_u24 v5, %d, v5" % W2STR)
    a("v_and_b32 v6, 3, v1")
    a("v_lshlrev_b32 v6, 3, v6")
    a("s_lshl_b32 s18, s24, 6")
    a("s_add_u32 s18, s18, 6144")
    a("v_add3_u32 v18, v5, v6, s18")
    a("v_add_u32 v2, %d, v16" % (3 * K2BUF))
    a("v_add_u32 v3, %d, v18" % (3 * K2BUF))
    a("s_lshl_b32 s30, s25, 10")
    a("s_lshl_b32 s31, s24, 10")
    a("s_add_u32 s31, s31, 6144")
    a("s_add_u32 s32, s31, 7168")
    a("s_waitcnt lgkmcnt(0)")
    a.ts()
    a("s_mul_i32 s18, s7, %d" % (512 * 896))
    a("s_mul_i32 s19, s8, 448")
    a("s_add_u32 s18, s18, s19")
    a("s_add_u32 s12, s12, s18")
    a("s_addc_u32 s13, s13, 0")
    a("s_mul_i32 s18, s6, 48")
    a("s_mul_i32 s19, s9, 6")
    a("s_add_u32 s18, s18, s19")
    a("s_add_u32 s18, s18, s25")
    a("s_lshl_b32 s18, s18, 7")
    a("s_lshl_b32 s19, s7, 4")
    a("s_add_u32 s18, s18, s19")
    a("s_lshl_b32 s18, s18, 10")
    a("s_add_u32 s14, s16, s18")
    a("s_addc_u32 s15, s17, 0")
    a("s_lshl_b32 s18, s7, 1")
    a("s_add_u32 s18, s18, s6")
    a("s_lshl_b32 s18, s18, 3")
    a("s_add_u32 s18, s18, s9")
    a("s_lshl_b32 s18, s18, 1")
    a("s_add_u32 s18, s18, s8")
    a("s_mul_i32 s18, s18, 84")
    a("s_mul_i32 s19, s24, 12")
    a("s_add_u32 s18, s18, s19")
    a("s_lshl_b32 s18, s18, 10")
    a("s_add_u32 s18, s18, %d" % PW_OFF)
    a("s_add_u32 s20, s16, s18")
    a("s_addc_u32 s21, s17, 0")

    def dma(c):
        if 'noload' in EXP:
            return
        boff = (c % NB) * K2BUF
        a(f"s_add_u32 m0, s31, {boff}")
        a("s_nop 0")
        a("global_load_lds_dwordx4 v10, s[12:13]")
        a(f"s_add_u32 m0, s32, {boff}")
        a("s_nop 0")
        a("global_load_lds_dwordx4 v11, s[12:13]")
        a(f"s_add_u32 m0, s30, {boff}")
        a("s_add_u32 s12, s12, 28672")
        a("s_addc_u32 s13, s13, 0")
        a("global_load_lds_dwordx4 v13, s[14:15]")
        a("v_add_u32 v13, 1024, v13")

    for c in range(NB):
        dma(c)
    for r in range(20, 68):
        a(f"v_mov_b32 v{r}, 0")
    a(f"s_waitcnt vmcnt({3*(NB-2)})")
    a("s_barrier")
    a.ts()

    def frag_reads(fs, step):
        if 'noread' in EXP:
            return
        buf = step % NB
        vb, va = ("v16", "v18") if buf < 3 else ("v2", "v3")
        off = (buf % 3) * K2BUF
        for qt in range(6):
            a(f"ds_read_b128 {vr(68+24*fs+4*qt,4)}, {vb} offset:{off + qt*1024}")
        for e in range(2):
            a(f"ds_read_b64_tr_b16 {vr(116+8*fs+4*e,2)}, {va} offset:{off + e*32}")
            a(f"ds_read_b64_tr_b16 {vr(116+8*fs+4*e+2,2)}, {va} offset:{off + e*32 + 16*W2STR}")

    def mfmas(fs, lo, hi):
        if 'nomfma' in EXP:
            return
        lst = [(e, qt) for e in range(2) for qt in range(6)]
        for (e, qt) in lst[lo:hi]:
            acc = 20 + (e * 6 + qt) * 4
            a(f"v_mfma_f32_16x16x32_bf16 {vr(acc,4)}, {vr(116+8*fs+4*e,4)}, {vr(68+24*fs+4*qt,4)}, {vr(acc,4)}")

    frag_reads(0, 0)
    a("s_waitcnt lgkmcnt(0)")
    a("s_barrier")
    for st in range(16):
        fs = st & 1
        if st + NB < 16:
            dma(st + NB)
        save = a.l
        a.l = []
        if st + 1 < 16:
            frag_reads(1 - fs, st + 1)
        rl = a.l
        a.l = []
        mfmas(fs, 0, 12)
        ml = a.l
        a.l = save
        for i in range(max(len(rl), len(ml))):
            if i < len(ml):
                a.l.append(ml[i])
            if i < len(rl):
                a.l.append(rl[i])
        if st < 15:
            last = min(15, st + NB)
            if st + 2 <= 15:
                a(f"s_waitcnt vmcnt({3*max(0,last-(st+2))}) lgkmcnt(0)")
            else:
                a("s_waitcnt lgkmcnt(0)")
            if st < 14:
                a("s_barrier")
        if st % 4 == 3:
            a.ts()
    a("v_lshlrev_b32 v2, 4, v1")
    a("v_add_u32 v3, 4096, v2")
    a("v_add_u32 v4, 8192, v2")
    a("s_nop 7")
    for t in range(12):
        a(f"global_store_dwordx4 v{2+t//4}, {vr(20+4*t,4)}, s[20:21] offset:{(t%4)*1024}{STF}")
    if TS_ON:
        a("s_waitcnt vmcnt(0)")
    a.ts()
    a.ts_dump(0)
    a.lab("k2_end")
    a("s_endpgm")


def gen_k3(a):
    a.lab("k3_kernel")
    a("s_cmp_ge_u32 s2, 336")
    a("s_cbranch_scc1 k3_end")
    a("s_load_dwordx2 s[14:15], s[0:1], 80")
    a("s_load_dwordx2 s[16:17], s[0:1], 96")
    a("v_and_b32 v1, 63, v0")
    a("v_lshrrev_b32 v2, 6, v0")
    a("s_nop 0")
    a("v_readfirstlane_b32 s24, v2")
    a("s_lshl_b32 s3, s2, 3")
    a("s_add_u32 s3, s3, s24")
    a("s_mul_i32 s4, s3, 3121")
    a("s_lshr_b32 s4, s4, 18")
    a("s_mul_i32 s5, s4, 84")
    a("s_sub_u32 s5, s3, s5")
    a("s_mul_i32 s6, s5, 43")
    a("s_lshr_b32 s6, s6, 8")
    a("s_mul_i32 s7, s6, 6")
    a("s_sub_u32 s7, s5, s7")
    a("s_and_b32 s8, s4, 1")
    a("s_bfe_u32 s9, s4, 0x30001")
    a("s_lshr_b32 s10, s4, 4")
    a("s_mul_i32 s11, s9, 96")
    a("s_lshl_b32 s12, s7, 4")
    a("s_add_u32 s11, s11, s12")
    a("s_mul_i32 s11, s11, 1792")
    a("s_mul_i32 s12, s10, 896")
    a("s_add_u32 s11, s11, s12")
    a("s_mul_i32 s12, s8, 448")
    a("s_add_u32 s11, s11, s12")
    a("s_lshl_b32 s12, s6, 5")
    a("s_add_u32 s11, s11, s12")
    a("s_lshl_b32 s12, s3, 10")
    a("s_add_u32 s12, s12, %d" % PW_OFF)
    a("v_lshlrev_b32 v2, 4, v1")
    a("v_and_b32 v3, 15, v1")
    a("v_lshrrev_b32 v4, 4, v1")
    a("v_mul_u32_u24 v5, 1792, v3")
    a("v_lshl_add_u32 v5, v4, 3, v5")
    a("s_waitcnt lgkmcnt(0)")
    a("s_add_u32 s16, s16, s12")
    a("s_addc_u32 s17, s17, 0")
    a("s_add_u32 s14, s14, s11")
    a("s_addc_u32 s15, s15, 0")
    for g in range(8):
        a(f"global_load_dwordx4 {vr(8+4*g,4)}, v2, s[16:17]")
        if g < 7:
            a("s_add_u32 s16, s16, %d" % (2688 * 1024))
            a("s_addc_u32 s17, s17, 0")
    for g in range(1, 8):
        a(f"s_waitcnt vmcnt({7-g})")
        for r in range(4):
            a(f"v_add_f32 v{8+r}, v{8+r}, v{8+4*g+r}")
    a("v_cvt_pk_bf16_f32 v6, v8, v9")
    a("v_cvt_pk_bf16_f32 v7, v10, v11")
    a("global_store_dwordx2 v5, v[6:7], s[14:15]")
    a.lab("k3_end")
    a("s_endpgm")


def kd(name, vgpr, sgpr):
    acc = (vgpr + 3) // 4 * 4
    return f""".amdhsa_kernel {name}
  .amdhsa_next_free_vgpr {vgpr}
  .amdhsa_next_free_sgpr {sgpr}
  .amdhsa_accum_offset {acc}
  .amdhsa_group_segment_fixed_size 0
  .amdhsa_kernarg_size 104
  .amdhsa_user_sgpr_count 2
  .amdhsa_user_sgpr_kernarg_segment_ptr 1
  .amdhsa_system_sgpr_workgroup_id_x 1
.end_amdhsa_kernel
"""


def main():
    global TS_ON
    if len(sys.argv) > 2 and sys.argv[2] == "ts":
        TS_ON = True
    out = HEADER
    out += f"; @launch kernel=k1_kernel grid=(256,1,1) block=(512,1,1) lds={K1_LDS}\n"
    out += f"; @launch kernel=k2_kernel grid=(256,1,1) block=(448,1,1) lds={K2_LDS}\n"
    out += f"; @launch kernel=k3_kernel grid=(336,1,1) block=(512,1,1) lds=0\n"
    out += '.amdgcn_target "amdgcn-amd-amdhsa--gfx950"\n.text\n'
    for nm, g in (("k1_kernel", gen_k1), ("k2_kernel", gen_k2), ("k3_kernel", gen_k3)):
        a = A()
        out += f".globl {nm}\n.p2align 8\n.type {nm},@function\n"
        g(a)
        out += a.text()
    sg = 102 if TS_ON else 40
    out += '.section .rodata,"a"\n.p2align 6\n'
    out += kd("k1_kernel", 256, sg)
    out += ".p2align 6\n"
    out += kd("k2_kernel", 132, sg)
    out += ".p2align 6\n"
    out += kd("k3_kernel", 40, 40)
    path = sys.argv[1] if len(sys.argv) > 1 else f"cdna_kernels/{NAME}.s"
    open(path, "w").write(out)


if __name__ == "__main__":
    main()
```

```python
import sys
import os
EXP = os.environ.get('EXP','')
STF = os.environ.get('STF','')
if STF: STF = ' ' + STF

NAME = "concat_heads__gqa_block_cached__gqa_block_cached__near_ridge"

HEADER = """; Kernarg layout for this problem (104 bytes, ptrs only, base s[0:1]):
"""


TS_ON = False


class A:
    def __init__(self):
        self.l = []
        self.nts = 0

    def ts(self):
        if not TS_ON:
            return
        n = self.nts
        self.nts += 1
        assert n < 30
        self.l.append(f"    s_memtime s[{40+2*n}:{41+2*n}]")
        self.l.append("    s_waitcnt lgkmcnt(0)")

    def ts_dump(self, wgsel):
        if not TS_ON:
            return
        self.l.append(f"    s_cmp_lg_u32 s2, {wgsel}")
        self.l.append("    s_cbranch_scc1 Lnodump%d" % id(self))
        self.l.append("    s_cmp_lg_u32 s24, 0")
        self.l.append("    s_cbranch_scc1 Lnodump%d" % id(self))
        self.l.append("    s_load_dwordx2 s[34:35], s[0:1], 88")
        self.l.append("    s_waitcnt lgkmcnt(0)")
        self.l.append("    v_mov_b32 v2, 0")
        for n in range(self.nts):
            self.l.append(f"    s_sub_u32 s36, s{40+2*n}, s40")
            self.l.append(f"    v_mov_b32 v3, s36")
            self.l.append(f"    global_store_dword v2, v3, s[34:35] offset:{4*n}")
        self.l.append("Lnodump%d:" % id(self))

    def __call__(self, s):
        self.l.append("    " + s)

    def lab(self, s):
        self.l.append(s + ":")

    def c(self, s):
        self.l.append("    ; " + s)

    def text(self):
        return "\n".join(self.l) + "\n"


def vr(b, n):
    return f"v[{b}:{b+n-1}]"


def sr(b, n):
    return f"s[{b}:{b+n-1}]"


XSTR = 928
WSTR = 544
XS = 0
WB = [96 * XSTR, 96 * XSTR + 64 * WSTR]
K1_LDS = 158720
QS = 0
VS = 96 * WSTR
KS = 2 * 96 * WSTR
PW_OFF = 16777216
FLAG_OFF = 48 * 1048576
FUSE23 = bool(os.environ.get('FUSE23'))


def gen_k1(a):
    WBS = 16384
    NBW = 4
    a.lab("k1_kernel")
    a("s_cmp_ge_u32 s2, 256")
    a("s_cbranch_scc1 k1_end")
    a("s_and_b32 s3, s2, 7")
    a("s_lshr_b32 s4, s2, 3")
    a("s_lshl_b32 s5, s3, 2")
    a("s_lshr_b32 s6, s4, 3")
    a("s_add_u32 s5, s5, s6")
    a("s_lshr_b32 s6, s5, 4")
    a("s_and_b32 s7, s5, 15")
    a("s_and_b32 s8, s4, 7")
    a("s_mul_i32 s9, s6, 40")
    a("s_add_u32 s10, s0, s9")
    a("s_addc_u32 s11, s1, 0")
    a("s_load_dwordx8 s[12:19], s[10:11], 0")
    a("s_load_dwordx2 s[20:21], s[0:1], 96")
    a("v_and_b32 v1, 63, v0")
    a("v_lshrrev_b32 v2, 6, v0")
    a("s_nop 0")
    a("v_readfirstlane_b32 s24, v2")
    a("v_lshlrev_b32 v10, 4, v1")
    a("v_mul_u32_u24 v3, 896, v2")
    a("v_add_u32 v10, v10, v3")
    a("v_lshrrev_b32 v3, 5, v1")
    a("v_lshl_add_u32 v3, v2, 1, v3")
    a("v_bfe_u32 v4, v3, 2, 2")
    a("v_and_b32 v5, 3, v3")
    a("v_lshl_add_u32 v4, v4, 3, v5")
    a("v_lshlrev_b32 v4, 13, v4")
    a("v_bfe_u32 v5, v1, 1, 4")
    a("v_and_b32 v6, 7, v3")
    a("v_xor_b32 v5, v5, v6")
    a("v_and_b32 v6, 1, v1")
    a("v_lshl_add_u32 v5, v5, 1, v6")
    a("v_lshl_add_u32 v12, v5, 4, v4")
    a("v_add_u32 v13, %d, v12" % (4 * 8192))
    a("v_lshrrev_b32 v3, 5, v0")
    a("v_and_b32 v4, 31, v0")
    a("v_lshlrev_b32 v4, 4, v4")
    a("v_lshlrev_b32 v16, 4, v0")
    a("v_mul_u32_u24 v5, %d, v3" % WSTR)
    a("v_add_u32 v17, v5, v4")
    a("v_add_u32 v17, %d, v17" % VS)
    a("s_mul_i32 s30, s24, %d" % XSTR)
    a("s_lshl_b32 s31, s24, 10")
    a("s_add_u32 s31, s31, %d" % WB[0])
    a("s_add_u32 s34, s31, 8192")
    a("s_waitcnt lgkmcnt(0)")
    a.ts()
    if FUSE23:
        a("s_cmp_ge_u32 s2, 32")
        a("s_cbranch_scc1 k1_noz")
        a("s_cmp_lg_u32 s24, 0")
        a("s_cbranch_scc1 k1_noz")
        a("s_lshl_b32 s9, s2, 7")
        a("s_add_u32 s9, s9, %d" % FLAG_OFF)
        a("v_mov_b32 v8, s9")
        a("v_mov_b32 v9, 0")
        a("s_mov_b64 s[36:37], exec")
        a("s_mov_b64 exec, 1")
        a("global_store_dword v8, v9, s[20:21] sc1")
        a("s_mov_b64 exec, s[36:37]")
        a.lab("k1_noz")
    a("s_mul_i32 s9, s8, 86016")
    a("s_add_u32 s12, s12, s9")
    a("s_addc_u32 s13, s13, 0")
    a("s_lshl_b32 s9, s8, 4")
    a("s_lshr_b32 s25, s7, 1")
    a("s_add_u32 s9, s9, s25")
    a("s_mul_i32 s9, s9, 24576")
    a("s_add_u32 s14, s14, s9")
    a("s_addc_u32 s15, s15, 0")
    a("s_add_u32 s16, s16, s9")
    a("s_addc_u32 s17, s17, 0")
    a("s_add_u32 s26, s16, 196608")
    a("s_addc_u32 s27, s17, 0")
    a("s_add_u32 s32, s14, 196608")
    a("s_addc_u32 s33, s15, 0")
    a("s_lshl_b32 s9, s7, 9")
    a("s_add_u32 s22, s18, s9")
    a("s_addc_u32 s23, s19, 0")

    ops = []

    def vm_wait(tag):
        idx = max(i for i, t in enumerate(ops) if t == tag)
        return len(ops) - 1 - idx

    def wq_dma(c):
        ops.extend([("wq", c), ("wq", c)])
        boff = (c % NBW) * WBS
        a(f"s_add_u32 m0, s31, {boff}")
        a("s_nop 0")
        a("global_load_lds_dwordx4 v12, s[22:23]")
        a(f"s_add_u32 m0, s34, {boff}")
        a("s_nop 0")
        a("global_load_lds_dwordx4 v13, s[22:23]")
        a("s_add_u32 s22, s22, 262144")
        a("s_addc_u32 s23, s23, 0")

    wq_dma(0)
    wq_dma(1)
    a("s_mov_b64 s[36:37], exec")
    a("s_mov_b32 exec_hi, 0x00ffffff")
    for j in range(12):
        a(f"s_add_u32 m0, s30, {j*8*XSTR}")
        a("s_nop 0")
        a("global_load_lds_dwordx4 v10, s[12:13]")
        ops.append(("x", 0))
        if j < 11:
            a("s_add_u32 s12, s12, 7168")
            a("s_addc_u32 s13, s13, 0")
    a("s_mov_b64 exec, s[36:37]")
    wq_dma(2)
    wq_dma(3)
    a("v_and_b32 v3, 15, v1")
    a("v_lshrrev_b32 v4, 4, v1")
    a("s_lshr_b32 s25, s24, 2")
    a("s_and_b32 s28, s24, 3")
    a("s_mul_i32 s29, s25, %d" % (48 * XSTR))
    a("v_mul_u32_u24 v5, %d, v3" % XSTR)
    a("v_lshlrev_b32 v6, 4, v4")
    a("v_add3_u32 v14, v5, v6, s29")
    a("v_lshrrev_b32 v5, 2, v3")
    a("v_lshl_add_u32 v5, v4, 2, v5")
    a("v_and_b32 v6, 3, v1")
    a("v_lshlrev_b32 v6, 3, v6")
    a("v_mul_u32_u24 v7, %d, v5" % WSTR)
    a("v_add_u32 v19, v7, v6")
    a("v_lshlrev_b32 v7, 9, v5")
    a("v_add_u32 v7, v7, v6")
    a("v_add_u32 v7, %d, v7" % WB[0])
    a("v_and_b32 v8, 7, v5")
    a("s_lshl_b32 s29, s28, 2")
    for dt in range(4):
        a(f"s_add_u32 s35, s29, {dt}")
        a("v_xor_b32 v9, s35, v8")
        a(f"v_lshl_add_u32 v{124+dt}, v9, 5, v7")
    for r in range(20, 68):
        a(f"v_mov_b32 v{r}, 0")
    a("s_waitcnt vmcnt(4)")
    a("s_barrier")
    a.ts()

    def frag_reads(fs, step):
        for qt in range(3):
            a(f"ds_read_b128 {vr(100+12*fs+4*qt,4)}, v14 offset:{qt*16*XSTR + step*64}")
        aoff = (step % NBW) * WBS
        for dt in range(4):
            a(f"ds_read_b64_tr_b16 {vr(68+16*fs+4*dt,2)}, v{124+dt} offset:{aoff}")
            a(f"ds_read_b64_tr_b16 {vr(68+16*fs+4*dt+2,2)}, v{124+dt} offset:{aoff + 8192}")

    def mfmas(fs, lo, hi):
        lst = [(dt, qt) for dt in range(4) for qt in range(3)]
        for (dt, qt) in lst[lo:hi]:
            acc = 20 + (dt * 3 + qt) * 4
            a(f"v_mfma_f32_16x16x32_bf16 {vr(acc,4)}, {vr(68+16*fs+4*dt,4)}, {vr(100+12*fs+4*qt,4)}, {vr(acc,4)}")

    frag_reads(0, 0)
    a("s_waitcnt lgkmcnt(0)")
    a("s_barrier")
    a.ts()
    kv = 0
    for st in range(14):
        fs = st & 1
        inter = (st + 1 < 14) and st != 13 and 'nointer' not in EXP
        if st + 1 < 14 and not inter:
            frag_reads(1 - fs, st + 1)
        if st + NBW < 14:
            wq_dma(st + NBW)
        if 4 <= st <= 9:
            for jj in range(2):
                q = (st - 4) * 2 + jj
                base, p0, p1 = ((128, "s[16:17]", "s[26:27]"), (152, "s[14:15]", "s[32:33]"))[q // 6]
                j = q % 6
                sb = p0 if j < 3 else p1
                a(f"v_add_u32 v2, {8192*(j%3)}, v16")
                a(f"global_load_dwordx4 {vr(base+4*j,4)}, v2, {sb}")
                ops.append(("kv", q))
        if st == 13:
            a("v_add_u32 v18, %d, v17" % (KS - VS))
            mfmas(fs, 0, 6)
            a("s_waitcnt vmcnt(0)")
            for j in range(6):
                off = (j // 3) * 48 * WSTR + (j % 3) * 16 * WSTR
                a(f"ds_write_b128 v17, {vr(128+4*j,4)} offset:{off}")
                a(f"ds_write_b128 v18, {vr(152+4*j,4)} offset:{off}")
            mfmas(fs, 6, 12)
        elif inter:
            sub = A()
            sub.nts = 99
            save = a.l
            a.l = []
            frag_reads(1 - fs, st + 1)
            rl = a.l
            a.l = []
            mfmas(fs, 0, 12)
            ml = a.l
            a.l = save
            for i in range(max(len(rl), len(ml))):
                if i < len(ml):
                    a.l.append(ml[i])
                if i < len(rl):
                    a.l.append(rl[i])
        else:
            mfmas(fs, 0, 12)
        if st < 13:
            last = min(13, st + NBW)
            if st + 2 <= 13:
                a(f"s_waitcnt vmcnt({vm_wait(('wq', st+2))}) lgkmcnt(0)")
            else:
                a("s_waitcnt lgkmcnt(0)")
            a("s_barrier")
        if st in (4, 9, 12):
            a.ts()
    a("s_mul_i32 s29, s25, %d" % (48 * WSTR))
    a("s_lshl_b32 s30, s28, 7")
    a("s_add_u32 s29, s29, s30")
    a("v_mul_u32_u24 v5, %d, v3" % WSTR)
    a("v_lshlrev_b32 v6, 3, v4")
    a("v_add3_u32 v2, v5, v6, s29")
    a("s_nop 4")
    for dt in range(4):
        for qt in range(3):
            acc = 20 + (dt * 3 + qt) * 4
            d = 6 + 2 * ((dt * 3 + qt) % 2)
            a(f"v_cvt_pk_bf16_f32 v{d}, v{acc}, v{acc+1}")
            a(f"v_cvt_pk_bf16_f32 v{d+1}, v{acc+2}, v{acc+3}")
            a(f"ds_write_b64 v2, v[{d}:{d+1}] offset:{qt*16*WSTR + dt*32}")
    a("s_cmp_lt_u32 s24, 6")
    a("s_cselect_b32 s31, 1, 0")
    a("s_cmp_ge_u32 s24, 3")
    a("s_cselect_b32 s25, 1, 0")
    a("s_mul_i32 s30, s25, 3")
    a("s_sub_u32 s28, s24, s30")
    a("s_waitcnt lgkmcnt(0)")
    a("s_barrier")
    a.ts()
    a("s_cmp_eq_u32 s31, 0")
    a("s_cbranch_scc1 k1_pf")
    a("s_mul_i32 s29, s25, %d" % (48 * WSTR))
    a("v_mul_u32_u24 v5, %d, v3" % WSTR)
    a("v_lshlrev_b32 v6, 4, v4")
    a("v_add3_u32 v2, v5, v6, s29")
    a("v_add_u32 v8, %d, v2" % KS)
    a("s_mul_i32 s30, s28, %d" % (16 * WSTR))
    a("v_add_u32 v2, s30, v2")
    for s in range(8):
        a(f"ds_read_b128 {vr(204+4*s,4)}, v2 offset:{s*64}")
    for r in range(236, 248):
        a(f"v_mov_b32 v{r}, 0")
    a("s_waitcnt lgkmcnt(0)")
    for kt in range(3):
        for s in range(8):
            a(f"ds_read_b128 {vr(68+(kt*8+s)*4,4)}, v8 offset:{kt*16*WSTR + s*64}")
            if (kt * 8 + s) % 8 == 7:
                pass
        a("s_waitcnt lgkmcnt(0)")
        for s in range(8):
            a(f"v_mfma_f32_16x16x32_bf16 {vr(236+4*kt,4)}, {vr(68+(kt*8+s)*4,4)}, {vr(204+4*s,4)}, {vr(236+4*kt,4)}")
    a("v_add_u32 v19, s29, v19")
    a("v_add_u32 v19, %d, v19" % VS)
    a("s_nop 7")
    a("s_nop 1")
    a.ts()
    S = list(range(236, 248))
    for j in range(0, 12, 2):
        a(f"v_cvt_pk_bf16_f32 v6, v{S[j]}, v{S[j+1]}")
        a(f"v_lshlrev_b32 v{S[j]}, 16, v6")
        a(f"v_and_b32 v{S[j+1]}, 0xffff0000, v6")
    a(f"v_max3_f32 v6, v{S[0]}, v{S[1]}, v{S[2]}")
    for j in range(3, 11, 2):
        a(f"v_max3_f32 v6, v6, v{S[j]}, v{S[j+1]}")
    a(f"v_max_f32 v6, v6, v{S[11]}")
    a("v_mov_b32 v7, v6")
    a("s_nop 1")
    a("v_permlane32_swap_b32 v6, v7")
    a("v_max_f32 v6, v6, v7")
    a("v_mov_b32 v7, v6")
    a("s_nop 1")
    a("v_permlane16_swap_b32 v6, v7")
    a("v_max_f32 v6, v6, v7")
    import struct
    cbits = struct.unpack("<I", struct.pack("<f", 0.0625 * 1.4426950408889634))[0]
    a(f"s_mov_b32 s29, 0x{cbits:08x}")
    a("v_mul_f32 v6, s29, v6")
    for j in range(12):
        a(f"v_fma_f32 v{S[j]}, v{S[j]}, s29, -v6")
    for j in range(12):
        a(f"v_exp_f32 v{S[j]}, v{S[j]}")
    a("s_nop 0")
    a(f"v_add_f32 v6, v{S[0]}, v{S[1]}")
    for j in range(2, 12):
        a(f"v_add_f32 v6, v6, v{S[j]}")
    a("v_mov_b32 v7, v6")
    a("s_nop 1")
    a("v_permlane32_swap_b32 v6, v7")
    a("v_add_f32 v6, v6, v7")
    a("v_mov_b32 v7, v6")
    a("s_nop 1")
    a("v_permlane16_swap_b32 v6, v7")
    a("v_add_f32 v6, v6, v7")
    a("v_rcp_f32 v6, v6")
    a("s_nop 0")
    for j in range(12):
        a(f"v_mul_f32 v{S[j]}, v{S[j]}, v6")
    for j in range(6):
        a(f"v_cvt_pk_bf16_f32 v{248+j}, v{S[2*j]}, v{S[2*j+1]}")
    a.ts()
    for r in range(68, 132):
        a(f"v_mov_b32 v{r}, 0")

    def vreads(t):
        b = 204 + (t % 4) * 4
        a(f"ds_read_b64_tr_b16 {vr(b,2)}, v19 offset:{t*32}")
        a(f"ds_read_b64_tr_b16 {vr(b+2,2)}, v19 offset:{t*32 + 16*WSTR}")
        a(f"ds_read_b64_tr_b16 {vr(132+2*t,2)}, v19 offset:{t*32 + 32*WSTR}")

    for t in range(3):
        vreads(t)
    for t in range(16):
        if t + 3 < 16:
            vreads(t + 3)
            a("s_waitcnt lgkmcnt(9)")
        else:
            a(f"s_waitcnt lgkmcnt({3*(15-t)})")
        b = 204 + (t % 4) * 4
        a(f"v_mfma_f32_16x16x32_bf16 {vr(68+4*t,4)}, {vr(b,4)}, v[248:251], {vr(68+4*t,4)}")
    a("s_nop 7")
    for t in range(16):
        a(f"v_mfma_f32_16x16x16_bf16 {vr(68+4*t,4)}, {vr(132+2*t,2)}, v[252:253], {vr(68+4*t,4)}")
    a("s_mul_i32 s29, s6, 48")
    a("s_lshl_b32 s30, s8, 1")
    a("s_add_u32 s30, s30, s25")
    a("s_mul_i32 s30, s30, 3")
    a("s_add_u32 s29, s29, s30")
    a("s_add_u32 s29, s29, s28")
    a("s_lshl_b32 s29, s29, 7")
    a("s_lshl_b32 s30, s7, 3")
    a("s_add_u32 s29, s29, s30")
    a("s_lshl_b32 s29, s29, 10")
    a("s_add_u32 s20, s20, s29")
    a("s_addc_u32 s21, s21, 0")
    a("v_lshlrev_b32 v2, 4, v1")
    a("v_add_u32 v9, 4096, v2")
    a("s_nop 7")
    for u in range(8):
        t0, t1 = 68 + 8 * u, 68 + 8 * u + 4
        d = 204 + (u % 4) * 4
        a(f"v_cvt_pk_bf16_f32 v{d}, v{t0}, v{t0+1}")
        a(f"v_cvt_pk_bf16_f32 v{d+1}, v{t0+2}, v{t0+3}")
        a(f"v_cvt_pk_bf16_f32 v{d+2}, v{t1}, v{t1+1}")
        a(f"v_cvt_pk_bf16_f32 v{d+3}, v{t1+2}, v{t1+3}")
        if u < 4:
            a(f"global_store_dwordx4 v2, {vr(d,4)}, s[20:21] offset:{u*1024}{STF}")
        else:
            a(f"global_store_dwordx4 v9, {vr(d,4)}, s[20:21] offset:{(u-4)*1024}{STF}")
    if TS_ON:
        a("s_waitcnt vmcnt(0)")
    a.ts()
    a.ts_dump(0)
    a.lab("k1_end")
    a("s_endpgm")
    a.lab("k1_pf")
    a("s_endpgm")


W2STR = 448
K2BUF = 6144 + 32 * W2STR
K2NB = int(os.environ.get('K2NB','6'))
K2_LDS = K2NB * K2BUF


def gen_k2(a):
    NB = K2NB
    a.lab("k2_kernel")
    a("s_cmp_ge_u32 s2, 256")
    a("s_cbranch_scc1 k2_end")
    a("s_and_b32 s3, s2, 7")
    a("s_lshr_b32 s4, s2, 3")
    a("s_lshr_b32 s6, s3, 2")
    a("s_and_b32 s5, s3, 3")
    a("s_lshl_b32 s5, s5, 1")
    a("s_bfe_u32 s7, s4, 0x10003")
    a("s_add_u32 s7, s7, s5")
    a("s_lshr_b32 s8, s4, 4")
    a("s_and_b32 s9, s4, 7")
    a("s_mul_i32 s10, s6, 40")
    a("s_add_u32 s10, s0, s10")
    a("s_addc_u32 s11, s1, 0")
    a("s_load_dwordx2 s[12:13], s[10:11], 32")
    a("s_load_dwordx2 s[16:17], s[0:1], 96")
    a("v_and_b32 v1, 63, v0")
    a("v_lshrrev_b32 v2, 6, v0")
    a("s_nop 0")
    a("v_readfirstlane_b32 s24, v2")
    a("s_mov_b32 s18, 2341")
    a("v_mul_lo_u32 v3, v0, s18")
    a("v_lshrrev_b32 v3, 16, v3")
    a("v_mul_u32_u24 v4, 28, v3")
    a("v_sub_u32 v4, v0, v4")
    a("v_lshlrev_b32 v4, 4, v4")
    a("v_mul_u32_u24 v5, 896, v3")
    a("v_add_u32 v10, v5, v4")
    a("v_add_u32 v11, %d, v10" % (16 * 896))
    a("s_min_u32 s25, s24, 5")
    a("v_lshlrev_b32 v13, 4, v1")
    a("v_lshlrev_b32 v16, 4, v1")
    a("v_and_b32 v3, 15, v1")
    a("v_lshrrev_b32 v4, 4, v1")
    a("v_lshrrev_b32 v5, 2, v3")
    a("v_lshl_add_u32 v5, v4, 2, v5")
    a("v_mul_u32_u24 v5, %d, v5" % W2STR)
    a("v_and_b32 v6, 3, v1")
    a("v_lshlrev_b32 v6, 3, v6")
    a("s_lshl_b32 s18, s24, 6")
    a("s_add_u32 s18, s18, 6144")
    a("v_add3_u32 v18, v5, v6, s18")
    a("v_add_u32 v2, %d, v16" % (3 * K2BUF))
    a("v_add_u32 v3, %d, v18" % (3 * K2BUF))
    a("s_lshl_b32 s30, s25, 10")
    a("s_lshl_b32 s31, s24, 10")
    a("s_add_u32 s31, s31, 6144")
    a("s_add_u32 s32, s31, 7168")
    a("s_waitcnt lgkmcnt(0)")
    a.ts()
    a("s_mul_i32 s18, s7, %d" % (512 * 896))
    a("s_mul_i32 s19, s8, 448")
    a("s_add_u32 s18, s18, s19")
    a("s_add_u32 s12, s12, s18")
    a("s_addc_u32 s13, s13, 0")
    a("s_mul_i32 s18, s6, 48")
    a("s_mul_i32 s19, s9, 6")
    a("s_add_u32 s18, s18, s19")
    a("s_add_u32 s18, s18, s25")
    a("s_lshl_b32 s18, s18, 7")
    a("s_lshl_b32 s19, s7, 4")
    a("s_add_u32 s18, s18, s19")
    a("s_lshl_b32 s18, s18, 10")
    a("s_add_u32 s14, s16, s18")
    a("s_addc_u32 s15, s17, 0")
    a("s_lshl_b32 s18, s7, 1")
    a("s_add_u32 s18, s18, s6")
    a("s_lshl_b32 s18, s18, 3")
    a("s_add_u32 s18, s18, s9")
    a("s_lshl_b32 s18, s18, 1")
    a("s_add_u32 s18, s18, s8")
    a("s_mul_i32 s18, s18, 84")
    a("s_mul_i32 s19, s24, 12")
    a("s_add_u32 s18, s18, s19")
    a("s_lshl_b32 s18, s18, 10")
    a("s_add_u32 s18, s18, %d" % PW_OFF)
    a("s_add_u32 s20, s16, s18")
    a("s_addc_u32 s21, s17, 0")

    def dma(c):
        if 'noload' in EXP:
            return
        boff = (c % NB) * K2BUF
        a(f"s_add_u32 m0, s31, {boff}")
        a("s_nop 0")
        a("global_load_lds_dwordx4 v10, s[12:13]")
        a(f"s_add_u32 m0, s32, {boff}")
        a("s_nop 0")
        a("global_load_lds_dwordx4 v11, s[12:13]")
        a(f"s_add_u32 m0, s30, {boff}")
        a("s_add_u32 s12, s12, 28672")
        a("s_addc_u32 s13, s13, 0")
        a("global_load_lds_dwordx4 v13, s[14:15]")
        a("v_add_u32 v13, 1024, v13")

    for c in range(NB):
        dma(c)
    for r in range(20, 68):
        a(f"v_mov_b32 v{r}, 0")
    a(f"s_waitcnt vmcnt({3*(NB-2)})")
    a("s_barrier")
    a.ts()

    def frag_reads(fs, step):
        if 'noread' in EXP:
            return
        buf = step % NB
        vb, va = ("v16", "v18") if buf < 3 else ("v2", "v3")
        off = (buf % 3) * K2BUF
        for qt in range(6):
            a(f"ds_read_b128 {vr(68+24*fs+4*qt,4)}, {vb} offset:{off + qt*1024}")
        for e in range(2):
            a(f"ds_read_b64_tr_b16 {vr(116+8*fs+4*e,2)}, {va} offset:{off + e*32}")
            a(f"ds_read_b64_tr_b16 {vr(116+8*fs+4*e+2,2)}, {va} offset:{off + e*32 + 16*W2STR}")

    def mfmas(fs, lo, hi):
        if 'nomfma' in EXP:
            return
        lst = [(e, qt) for e in range(2) for qt in range(6)]
        for (e, qt) in lst[lo:hi]:
            acc = 20 + (e * 6 + qt) * 4
            a(f"v_mfma_f32_16x16x32_bf16 {vr(acc,4)}, {vr(116+8*fs+4*e,4)}, {vr(68+24*fs+4*qt,4)}, {vr(acc,4)}")

    frag_reads(0, 0)
    a("s_waitcnt lgkmcnt(0)")
    a("s_barrier")
    for st in range(16):
        fs = st & 1
        if st + NB < 16:
            dma(st + NB)
        save = a.l
        a.l = []
        if st + 1 < 16:
            frag_reads(1 - fs, st + 1)
        rl = a.l
        a.l = []
        mfmas(fs, 0, 12)
        ml = a.l
        a.l = save
        for i in range(max(len(rl), len(ml))):
            if i < len(ml):
                a.l.append(ml[i])
            if i < len(rl):
                a.l.append(rl[i])
        if st < 15:
            last = min(15, st + NB)
            if st + 2 <= 15:
                a(f"s_waitcnt vmcnt({3*max(0,last-(st+2))}) lgkmcnt(0)")
            else:
                a("s_waitcnt lgkmcnt(0)")
            if st < 14:
                a("s_barrier")
        if st % 4 == 3:
            a.ts()
    a("v_lshlrev_b32 v2, 4, v1")
    a("v_add_u32 v3, 4096, v2")
    a("v_add_u32 v4, 8192, v2")
    a("s_nop 7")
    for t in range(12):
        a(f"global_store_dwordx4 v{2+t//4}, {vr(20+4*t,4)}, s[20:21] offset:{(t%4)*1024}{STF}")
    if FUSE23:
        a("s_load_dwordx2 s[48:49], s[0:1], 80")
        a("s_lshl_b32 s18, s6, 3")
        a("s_add_u32 s18, s18, s9")
        a("s_lshl_b32 s18, s18, 1")
        a("s_add_u32 s18, s18, s8")
        a("s_mul_i32 s56, s18, 84")
        a("s_lshl_b32 s18, s18, 7")
        a("s_add_u32 s18, s18, %d" % FLAG_OFF)
        a("v_mov_b32 v8, s18")
        a("s_waitcnt vmcnt(0)")
        a("s_barrier")
        a("s_cmp_lg_u32 s24, 0")
        a("s_cbranch_scc1 k2_pok")
        a("s_mov_b64 s[54:55], exec")
        a("s_mov_b64 exec, 1")
        a("v_mov_b32 v9, 1")
        a("global_atomic_add v8, v9, s[16:17]")
        a("s_mov_b64 exec, s[54:55]")
        a("s_mov_b32 s44, 0")
        a.lab("k2_poll")
        a("global_load_dword v9, v8, s[16:17] sc1")
        a("s_waitcnt vmcnt(0)")
        a("v_readfirstlane_b32 s45, v9")
        a("s_nop 3")
        a("s_cmp_ge_u32 s45, 8")
        a("s_cbranch_scc1 k2_pok")
        a("s_sleep 2")
        a("s_add_u32 s44, s44, 1")
        a("s_cmp_lt_u32 s44, 0x40000")
        a("s_cbranch_scc1 k2_poll")
        a.lab("k2_pok")
        a("s_barrier")
        a.ts()
        a("v_lshlrev_b32 v2, 4, v1")
        a("v_and_b32 v3, 15, v1")
        a("v_lshrrev_b32 v4, 4, v1")
        a("v_mul_u32_u24 v5, 1792, v3")
        a("v_lshl_add_u32 v5, v4, 3, v5")
        a("s_waitcnt lgkmcnt(0)")

        def do_tile(j, skip):
            a(f"s_add_u32 s18, s24, {7*j}")
            a("s_lshl_b32 s18, s18, 3")
            a("s_add_u32 s18, s18, s7")
            a("s_cmp_ge_u32 s18, 84")
            a(f"s_cbranch_scc1 {skip}")
            a("s_mul_i32 s19, s18, 43")
            a("s_lshr_b32 s19, s19, 8")
            a("s_mul_i32 s22, s19, 6")
            a("s_sub_u32 s22, s18, s22")
            a("s_mul_i32 s23, s9, 96")
            a("s_lshl_b32 s27, s22, 4")
            a("s_add_u32 s23, s23, s27")
            a("s_mul_i32 s23, s23, 1792")
            a("s_mul_i32 s27, s6, 896")
            a("s_add_u32 s23, s23, s27")
            a("s_mul_i32 s27, s8, 448")
            a("s_add_u32 s23, s23, s27")
            a("s_lshl_b32 s27, s19, 5")
            a("s_add_u32 s23, s23, s27")
            a("s_add_u32 s28, s48, s23")
            a("s_addc_u32 s29, s49, 0")
            a("s_add_u32 s18, s18, s56")
            a("s_lshl_b32 s18, s18, 10")
            a("s_add_u32 s18, s18, %d" % PW_OFF)
            a("s_add_u32 s22, s16, s18")
            a("s_addc_u32 s23, s17, 0")
            for gg in range(8):
                a(f"global_load_dwordx4 {vr(20+4*gg,4)}, v2, s[22:23] sc1")
                if gg < 7:
                    a("s_add_u32 s22, s22, %d" % (2688 * 1024))
                    a("s_addc_u32 s23, s23, 0")
            for gg in range(1, 8):
                a(f"s_waitcnt vmcnt({7-gg})")
                for r in range(4):
                    a(f"v_add_f32 v{20+r}, v{20+r}, v{20+4*gg+r}")
            a("v_cvt_pk_bf16_f32 v6, v20, v21")
            a("v_cvt_pk_bf16_f32 v7, v22, v23")
            a("global_store_dwordx2 v5, v[6:7], s[28:29]")
            a.lab(skip)

        do_tile(0, "k2_t0")
        do_tile(1, "k2_t1")
    if TS_ON:
        a("s_waitcnt vmcnt(0)")
    a.ts()
    a.ts_dump(0)
    a.lab("k2_end")
    a("s_endpgm")


def gen_k3(a):
    a.lab("k3_kernel")
    a("s_cmp_ge_u32 s2, 336")
    a("s_cbranch_scc1 k3_end")
    a("s_load_dwordx2 s[14:15], s[0:1], 80")
    a("s_load_dwordx2 s[16:17], s[0:1], 96")
    a("v_and_b32 v1, 63, v0")
    a("v_lshrrev_b32 v2, 6, v0")
    a("s_nop 0")
    a("v_readfirstlane_b32 s24, v2")
    a("s_lshl_b32 s3, s2, 3")
    a("s_add_u32 s3, s3, s24")
    a("s_mul_i32 s4, s3, 3121")
    a("s_lshr_b32 s4, s4, 18")
    a("s_mul_i32 s5, s4, 84")
    a("s_sub_u32 s5, s3, s5")
    a("s_mul_i32 s6, s5, 43")
    a("s_lshr_b32 s6, s6, 8")
    a("s_mul_i32 s7, s6, 6")
    a("s_sub_u32 s7, s5, s7")
    a("s_and_b32 s8, s4, 1")
    a("s_bfe_u32 s9, s4, 0x30001")
    a("s_lshr_b32 s10, s4, 4")
    a("s_mul_i32 s11, s9, 96")
    a("s_lshl_b32 s12, s7, 4")
    a("s_add_u32 s11, s11, s12")
    a("s_mul_i32 s11, s11, 1792")
    a("s_mul_i32 s12, s10, 896")
    a("s_add_u32 s11, s11, s12")
    a("s_mul_i32 s12, s8, 448")
    a("s_add_u32 s11, s11, s12")
    a("s_lshl_b32 s12, s6, 5")
    a("s_add_u32 s11, s11, s12")
    a("s_lshl_b32 s12, s3, 10")
    a("s_add_u32 s12, s12, %d" % PW_OFF)
    a("v_lshlrev_b32 v2, 4, v1")
    a("v_and_b32 v3, 15, v1")
    a("v_lshrrev_b32 v4, 4, v1")
    a("v_mul_u32_u24 v5, 1792, v3")
    a("v_lshl_add_u32 v5, v4, 3, v5")
    a("s_waitcnt lgkmcnt(0)")
    a("s_add_u32 s16, s16, s12")
    a("s_addc_u32 s17, s17, 0")
    a("s_add_u32 s14, s14, s11")
    a("s_addc_u32 s15, s15, 0")
    for g in range(8):
        a(f"global_load_dwordx4 {vr(8+4*g,4)}, v2, s[16:17]")
        if g < 7:
            a("s_add_u32 s16, s16, %d" % (2688 * 1024))
            a("s_addc_u32 s17, s17, 0")
    for g in range(1, 8):
        a(f"s_waitcnt vmcnt({7-g})")
        for r in range(4):
            a(f"v_add_f32 v{8+r}, v{8+r}, v{8+4*g+r}")
    a("v_cvt_pk_bf16_f32 v6, v8, v9")
    a("v_cvt_pk_bf16_f32 v7, v10, v11")
    a("global_store_dwordx2 v5, v[6:7], s[14:15]")
    a.lab("k3_end")
    a("s_endpgm")


def kd(name, vgpr, sgpr):
    acc = (vgpr + 3) // 4 * 4
    return f""".amdhsa_kernel {name}
  .amdhsa_next_free_vgpr {vgpr}
  .amdhsa_next_free_sgpr {sgpr}
  .amdhsa_accum_offset {acc}
  .amdhsa_group_segment_fixed_size 0
  .amdhsa_kernarg_size 104
  .amdhsa_user_sgpr_count 2
  .amdhsa_user_sgpr_kernarg_segment_ptr 1
  .amdhsa_system_sgpr_workgroup_id_x 1
.end_amdhsa_kernel
"""


def main():
    global TS_ON
    if len(sys.argv) > 2 and sys.argv[2] == "ts":
        TS_ON = True
    out = HEADER
    out += f"; @launch kernel=k1_kernel grid=(256,1,1) block=(512,1,1) lds={K1_LDS}\n"
    out += f"; @launch kernel=k2_kernel grid=(256,1,1) block=(448,1,1) lds={K2_LDS}\n"
    if not FUSE23:
        out += f"; @launch kernel=k3_kernel grid=(336,1,1) block=(512,1,1) lds=0\n"
    out += '.amdgcn_target "amdgcn-amd-amdhsa--gfx950"\n.text\n'
    for nm, g in ((("k1_kernel", gen_k1), ("k2_kernel", gen_k2)) if FUSE23 else (("k1_kernel", gen_k1), ("k2_kernel", gen_k2), ("k3_kernel", gen_k3))):
        a = A()
        out += f".globl {nm}\n.p2align 8\n.type {nm},@function\n"
        g(a)
        out += a.text()
    sg = 102 if TS_ON else 64
    out += '.section .rodata,"a"\n.p2align 6\n'
    out += kd("k1_kernel", 256, sg)
    out += ".p2align 6\n"
    out += kd("k2_kernel", 132, sg)
    if not FUSE23:
        out += ".p2align 6\n"
        out += kd("k3_kernel", 40, 40)
    path = sys.argv[1] if len(sys.argv) > 1 else f"cdna_kernels/{NAME}.s"
    open(path, "w").write(out)


if __name__ == "__main__":
    main()
```
